```python
import torch

def _softmax(x, axis=-1):
    return torch.softmax(x, dim=axis)
def _gelu(x):
    return torch.nn.functional.gelu(x, approximate="tanh")
def _silu(x):
    return torch.nn.functional.silu(x)
def _sigmoid(x):
    return torch.sigmoid(x)
def _layernorm(x, axis=-1, eps=1e-5):
    m = x.mean(dim=axis, keepdim=True)
    v = x.var(dim=axis, keepdim=True, unbiased=False)
    return (x - m) / torch.sqrt(v + eps)
def _scatter_add(tgt, idx, src, axis=0):
    return tgt.clone().index_add_(axis, idx, src)
def _segment_sum(src, seg, n):
    out = torch.zeros((n,) + src.shape[1:], dtype=src.dtype)
    return out.index_add_(0, seg, src)
def _pad(x, pw):
    flat = tuple(v for pair in reversed(pw) for v in pair)
    return torch.nn.functional.pad(x, flat)

kernel_name = 'standalone__molecular_angular_gemnet__graph'

def setup_inputs():

    _w = (lambda a: (lambda t: t.to(torch.bfloat16) if t.is_floating_point() else t)(torch.as_tensor(a)))
    N, deg, De, L = 10000, 16, 16, 2
    E = N * deg
    T = E * deg
    NR = 8
    dist = torch.rand(E).to(float)
    angle = (torch.rand(T) * torch.pi).to(float)
    centers = torch.linspace(0.0, 1.0, NR).to(float)
    ang_freq = torch.arange(1, L + 1).to(float)
    return {
        "m": _w((lambda *s: torch.randn(*s, dtype=torch.bfloat16) * 0.05)(E, De)),
        "idx_in": _w((lambda lo, hi, *s: torch.randint(lo, hi, s))(0, E, T).to(torch.int64)),
        "idx_out": _w((lambda lo, hi, *s: torch.randint(lo, hi, s))(0, E, T).to(torch.int64)),
        "dist": _w(dist),
        "angle": _w(angle),
        "centers": _w(centers),
        "ang_freq": _w(ang_freq),
        "w_rbf": _w((lambda *s: torch.randn(*s, dtype=torch.bfloat16) * 0.2)(NR, De)),
        "w_sbf": _w((lambda *s: torch.randn(*s, dtype=torch.bfloat16) * 0.2)(NR * L, De)),
        "w_down": _w((lambda *s: torch.randn(*s, dtype=torch.bfloat16) * 0.2)(De, De)),
        "w_up": _w((lambda *s: torch.randn(*s, dtype=torch.bfloat16) * 0.2)(De, De)),
    }

def reference(m, idx_in, idx_out, dist, angle, centers, ang_freq, w_rbf, w_sbf, w_down, w_up):
    E, De = m.shape[0], m.shape[1]
    NR = centers.shape[0]
    L = ang_freq.shape[0]
    rbf = torch.exp(-10.0 * (dist[:, None] - centers[None, :]) ** 2)
    cbf = torch.cos(ang_freq[None, :] * angle[:, None])
    rbf_t = rbf[idx_out]
    sbf = torch.reshape(rbf_t[:, :, None] * cbf[:, None, :], (-1, NR * L))
    x = (m[idx_in] @ w_down) * (sbf @ w_sbf)
    agg = _segment_sum(x, idx_out, E)
    return m + (agg @ w_up) * (rbf @ w_rbf)
```

```python
import sys

NAME = "standalone__molecular_angular_gemnet__graph"
E = 160000
T = 2560000
NB = 250
CH = 10240
EB = 640
WS_K = 0
WS_A = 10240000
WS_TB = 15360000
CAP = 16384
D = 4

import os
DBG = int(os.environ.get("DBG", "0"))
out = []
def dbg_sregs(regs, tmpv, wave=0, wg=0, base=0):
    lab = f"DBG_skip_{len(out)}"
    I(f"s_cmp_lg_u32 s2, {wg}")
    I(f"s_cbranch_scc1 {lab}")
    I(f"s_cmp_lg_u32 s3, {wave}")
    I(f"s_cbranch_scc1 {lab}")
    I("s_load_dwordx2 s[90:91], s[0:1], 96")
    I("s_waitcnt lgkmcnt(0)")
    srd(92, "s90", "s91", 256)
    I(f"v_mov_b32 v{tmpv+1}, 0")
    for k, r in enumerate(regs):
        I(f"v_mov_b32 v{tmpv}, {r}")
        I(f"buffer_store_dword v{tmpv}, v{tmpv+1}, s[92:95], 0 offen offset:{(base+k)*4}")
    I("s_waitcnt vmcnt(0)")
    L(lab)
def dbg_vregs(regs, tmpv, wave=0, wg=0):
    lab = f"DBG_skip_{len(out)}"
    I(f"s_cmp_lg_u32 s2, {wg}")
    I(f"s_cbranch_scc1 {lab}")
    I(f"s_cmp_lg_u32 s3, {wave}")
    I(f"s_cbranch_scc1 {lab}")
    I("s_load_dwordx2 s[90:91], s[0:1], 96")
    I("s_waitcnt lgkmcnt(0)")
    srd(92, "s90", "s91", 3584)
    I(f"v_lshlrev_b32 v{tmpv}, 2, v1")
    for k, r in enumerate(regs):
        I(f"buffer_store_dword v{r}, v{tmpv}, s[92:95], 0 offen offset:{k*256}")
    I("s_waitcnt vmcnt(0)")
    L(lab)
def I(s): out.append("    " + s)
def L(s): out.append(s + ":")
def C(s): out.append("    ; " + s)

def vr(a, n): return "v[%d:%d]" % (a, a + n - 1)
def sr(a, n): return "s[%d:%d]" % (a, a + n - 1)

def srd(d, lo, hi, nbytes):
    I(f"s_mov_b32 s{d}, {lo}")
    I(f"s_mov_b32 s{d+1}, {hi}")
    I(f"s_mov_b32 s{d+2}, {nbytes}")
    I(f"s_mov_b32 s{d+3}, 0x20000")

def wave_scan(x):
    for sh in (1, 2, 4, 8):
        I("s_nop 1")
        I(f"v_add_u32_dpp v{x}, v{x}, v{x} row_shr:{sh} row_mask:0xf bank_mask:0xf bound_ctrl:0")
    I("s_nop 1")
    I(f"v_add_u32_dpp v{x}, v{x}, v{x} row_bcast:15 row_mask:0xa bank_mask:0xf")
    I("s_nop 1")
    I(f"v_add_u32_dpp v{x}, v{x}, v{x} row_bcast:31 row_mask:0xc bank_mask:0xf")

def header(kernels):
    out.append(open("header.txt").read().rstrip("\n"))
    for (k, g, b, lds) in kernels:
        out.append(f"; @launch kernel={k} grid=({g},1,1) block=({b},1,1) lds={lds}")
    out.append('.amdgcn_target "amdgcn-amd-amdhsa--gfx950"')
    out.append(".text")

def kstart(name):
    out.append(f".globl {name}")
    out.append(".p2align 8")
    out.append(f".type {name},@function")
    L(name)

def kdesc(name, vgpr, sgpr=102):
    out.append(f".amdhsa_kernel {name}")
    out.append(f"  .amdhsa_next_free_vgpr {vgpr}")
    out.append(f"  .amdhsa_next_free_sgpr {sgpr}")
    out.append(f"  .amdhsa_accum_offset {(vgpr + 3) // 4 * 4}")
    out.append("  .amdhsa_group_segment_fixed_size 0")
    out.append("  .amdhsa_kernarg_size 112")
    out.append("  .amdhsa_user_sgpr_count 2")
    out.append("  .amdhsa_user_sgpr_kernarg_segment_ptr 1")
    out.append("  .amdhsa_system_sgpr_workgroup_id_x 1")
    out.append(".end_amdhsa_kernel")

P_CNT = 0
P_ST = 1024
P_IMG = 2048
P_IMGA = P_IMG + CH * 4
P_LDS = P_IMG + CH * 6

def gen_P(name):
    kstart(name)
    I(f"s_cmp_ge_u32 s2, {NB}")
    I("s_cbranch_scc1 P_end")
    I("s_load_dwordx4 s[4:7], s[0:1], 8")
    I("s_load_dwordx2 s[8:9], s[0:1], 32")
    I("s_load_dwordx2 s[10:11], s[0:1], 104")
    I("v_lshlrev_b32 v1, 4, v0")
    I("v_lshlrev_b32 v2, 3, v0")
    I("v_lshlrev_b32 v3, 2, v0")
    I(f"s_mul_i32 s28, s2, {CH*4}")
    I(f"s_mul_i32 s31, s2, {CH*2}")
    I("s_add_u32 s29, s28, 16384")
    I("s_add_u32 s30, s28, 32768")
    I("s_add_u32 s32, s31, 8192")
    I("s_add_u32 s33, s31, 16384")
    I("v_and_b32 v56, 0x3fc, v3")
    I("v_mov_b32 v57, 0")
    I(f"ds_write_b32 v56, v57 offset:{P_CNT}")
    I("s_waitcnt lgkmcnt(0)")
    srd(12, "s6", "s7", T * 4)
    srd(16, "s4", "s5", T * 4)
    srd(20, "s8", "s9", T * 2)
    srd(24, "s10", "s11", WS_TB + NB * 1024)
    O = [4, 5, 6, 7, 8, 9, 10, 11, 12, 13]
    IN = [16, 17, 18, 19, 20, 21, 22, 23, 24, 25]
    AN = [28, 29, 30, 31, 32]
    B4 = list(range(36, 46))
    RK = list(range(46, 56))
    I("buffer_load_dwordx4 v[4:7], v1, s[12:15], s28 offen nt")
    I("buffer_load_dwordx4 v[8:11], v1, s[12:15], s29 offen nt")
    I("buffer_load_dwordx2 v[12:13], v2, s[12:15], s30 offen nt")
    I("buffer_load_dwordx4 v[16:19], v1, s[16:19], s28 offen nt")
    I("buffer_load_dwordx4 v[20:23], v1, s[16:19], s29 offen nt")
    I("buffer_load_dwordx2 v[24:25], v2, s[16:19], s30 offen nt")
    I("buffer_load_dwordx2 v[28:29], v2, s[20:23], s31 offen nt")
    I("buffer_load_dwordx2 v[30:31], v2, s[20:23], s32 offen nt")
    I("buffer_load_dword v32, v3, s[20:23], s33 offen nt")
    I("s_movk_i32 s34, 0xff60")
    I(f"s_mov_b32 s35, {131072 - 80000}")
    I("s_mov_b32 s36, 0x80000000")
    I("v_mov_b32 v57, 1")
    I("s_barrier")
    for part, (ks, wc) in enumerate((([0, 1, 2, 3], 8), ([4, 5, 6, 7], 7), ([8, 9], 6))):
        I(f"s_waitcnt vmcnt({wc})")
        for k in ks:
            I(f"v_lshrrev_b32 v{B4[k]}, 7, v{O[k]}")
        for k in ks:
            I(f"v_mul_u32_u24 v{B4[k]}, 0xcccd, v{B4[k]}")
        for k in ks:
            I(f"v_lshrrev_b32 v{B4[k]}, 16, v{B4[k]}")
        for k in ks:
            I(f"v_and_b32 v{B4[k]}, -4, v{B4[k]}")
        for k in ks:
            I(f"ds_add_rtn_u32 v{RK[k]}, v{B4[k]}, v57 offset:{P_CNT}")
        for k in ks:
            I(f"v_mad_i32_i24 v{O[k]}, v{B4[k]}, s34, v{O[k]}")
    I("s_waitcnt lgkmcnt(0)")
    I("s_barrier")
    I("v_and_b32 v58, 63, v0")
    I("v_lshlrev_b32 v59, 4, v58")
    I(f"ds_read_b128 v[60:63], v59 offset:{P_CNT}")
    I("s_waitcnt lgkmcnt(0)")
    I("v_add_u32 v64, v60, v61")
    I("v_add_u32 v65, v64, v62")
    I("v_add_u32 v66, v65, v63")
    I("v_mov_b32 v67, v66")
    wave_scan(67)
    I("v_sub_u32 v67, v67, v66")
    I("v_add_u32 v69, v67, v60")
    I("v_add_u32 v70, v67, v64")
    I("v_add_u32 v71, v67, v65")
    I("v_mov_b32 v68, v67")
    I(f"s_movk_i32 s37, {P_IMG}")
    for j in range(4):
        I(f"v_lshl_add_u32 v{72+j}, v{68+j}, 2, s37")
    I(f"ds_write_b128 v59, v[72:75] offset:{P_ST}")
    for j in range(4):
        I(f"v_lshl_or_b32 v{76+j}, v{60+j}, 16, v{68+j}")
    I("v_readfirstlane_b32 s38, v0")
    I(f"s_lshl_b32 s39, s2, 10")
    I(f"s_add_u32 s39, s39, {WS_TB}")
    I("s_cmp_lg_u32 s38, 0")
    I("s_cbranch_scc1 P_notab")
    I("buffer_store_dwordx4 v[76:79], v59, s[24:27], s39 offen")
    L("P_notab")
    for k in range(10):
        I(f"ds_read_b32 v{B4[k]}, v{B4[k]} offset:{P_ST}")
    for k in range(10):
        if k == 0: I("s_waitcnt vmcnt(5)")
        if k == 4: I("s_waitcnt vmcnt(4)")
        if k == 8: I("s_waitcnt vmcnt(3)")
        I(f"v_add_lshl_u32 v58, v{IN[k]}, s35, 14")
        I(f"v_lshl_or_b32 v{IN[k]}, v{O[k]}, 21, v{IN[k]}")
        I(f"v_and_or_b32 v{IN[k]}, v58, s36, v{IN[k]}")
    return O, IN, AN, B4, RK

def gen_P_rest(O, IN, AN, B4, RK):
    I("s_waitcnt lgkmcnt(0)")
    for k in range(10):
        I(f"v_lshl_add_u32 v{B4[k]}, v{RK[k]}, 2, v{B4[k]}")
    for k in range(10):
        I(f"ds_write_b32 v{B4[k]}, v{IN[k]}")
    for k in range(10):
        I(f"v_lshrrev_b32 v{RK[k]}, 1, v{B4[k]}")
    I("s_waitcnt vmcnt(0)")
    for k in range(10):
        op = "ds_write_b16_d16_hi" if (k & 1) else "ds_write_b16"
        I(f"{op} v{RK[k]}, v{AN[k>>1]} offset:{P_IMGA - P_IMG // 2}")
    I("s_waitcnt lgkmcnt(0)")
    I("s_barrier")
    I("v_readfirstlane_b32 s38, v0")
    I(f"s_mul_i32 s40, s2, {CH*4}")
    I(f"s_mul_i32 s41, s2, {CH*2}")
    I(f"s_add_u32 s41, s41, {WS_A - CH*4}")
    for r in range(4):
        I(f"ds_read_b128 {vr(60+4*r,4)}, v1 offset:{P_IMG + r*16384}")
    I("s_add_u32 s42, s40, 16384")
    I("s_cmp_lt_u32 s38, 512")
    I("s_cselect_b32 s43, s40, s41")
    I("s_add_u32 s43, s43, 32768")
    I("s_add_u32 s44, s41, 49152")
    I("s_waitcnt lgkmcnt(3)")
    I("buffer_store_dwordx4 v[60:63], v1, s[24:27], s40 offen")
    I("s_waitcnt lgkmcnt(2)")
    I("buffer_store_dwordx4 v[64:67], v1, s[24:27], s42 offen")
    I("s_waitcnt lgkmcnt(1)")
    I("buffer_store_dwordx4 v[68:71], v1, s[24:27], s43 offen")
    I("s_cmp_ge_u32 s38, 768")
    I("s_cbranch_scc1 P_end")
    I("s_waitcnt lgkmcnt(0)")
    I("buffer_store_dwordx4 v[72:75], v1, s[24:27], s44 offen")
    L("P_end")
    I("s_endpgm")

C_CNT = 0
C_ST = 1024
C_MISC = 2304
C_SENT = 2560
C_COEF = 4096
C_REC = 20480
C_LDS = C_REC + CAP * 8

vLane = 1; vH16 = 2; vRecOff = 3; vCoefW = 4; vCoefR = 5; vFreq = 6; vZero = 7
vCen0 = 8; vCen1 = 9; vSh = 10; vOutOff = 11; vLen = 12; vOffK = 13
vWsbf = 14; vWup = 16; vWrb = 18
vWd1 = 20; vWd2 = 24
vAcc = 28
vDist = 48
vMrow = 54
vW = 64
vKA = vW
vRank = vW + 32
vT = vW + 48
vG = vW
vCA = vW + 16; vCV = vW + 20
vRec = vW + 24
vBt = vW + 28
vD1 = vW + 32; vD2 = vW + 36
vAp = vW + 40
vX = vW + 44

sBase = 24; sRL = 25; sMaxLen = 26; sFinal = 27; sPos = 28; sInc = 29; sE0 = 30; sA1 = 31
sMask = 32
sTc = 64; sE1 = 74; sT = 75; sPhase = 76; sSlot = 77; sOutB = 78; sWave = 3
sTmp = 80
sM18 = 96; sA0 = 97; sHi = 98

def advance_pos():
    I(f"s_add_u32 s{sPos}, s{sPos}, s{sInc}")
    I(f"s_cmp_eq_u32 s{sPos}, s{sE0}")
    I(f"s_cselect_b32 s{sPos}, s{sA1}, s{sPos}")
    I(f"s_cmp_eq_u32 s{sPos}, s{sE1}")
    I(f"s_cselect_b32 s{sPos}, {C_SENT}, s{sPos}")
    I(f"s_cselect_b32 s{sInc}, 0, s{sInc}")

def issue_tile(slot, rec):
    t = vX; a = vX + 1
    I(f"v_and_b32 v{t}, s{sM18}, v{rec}")
    I(f"v_lshl_or_b32 v{t}, v{t}, 5, v{vH16}")
    I(f"buffer_load_dwordx4 {vr(vG+4*slot,4)}, v{t}, s[12:15], 0 offen")
    I(f"v_lshlrev_b32 v{a}, 16, v{rec+1}")
    I(f"v_bfe_u32 v{vCA+slot}, v{rec}, 21, 3")
    I(f"v_mul_f32 v{a}, v{a}, v{vFreq}")
    I(f"v_lshl_add_u32 v{vCA+slot}, v{vCA+slot}, 7, v{vCoefW}")
    I(f"v_fract_f32 v{a}, v{a}")
    I(f"v_cos_f32 v{a}, v{a}")

def gen_C(name):
    kstart(name)
    I(f"s_cmp_ge_u32 s2, {NB}")
    I("s_cbranch_scc1 C_end")
    I("s_load_dwordx16 s[64:79], s[0:1], 24")
    I("s_load_dwordx2 s[80:81], s[0:1], 0")
    I("s_load_dwordx2 s[82:83], s[0:1], 88")
    I("s_load_dwordx2 s[84:85], s[0:1], 104")
    I(f"v_and_b32 v{vLane}, 63, v0")
    I(f"v_lshrrev_b32 v{vX}, 6, v0")
    I("s_nop 0")
    I(f"v_readfirstlane_b32 s{sWave}, v{vX}")
    g = vX + 1; i16 = vX + 2; t = vX + 3; u = vX + 4
    I(f"v_lshrrev_b32 v{g}, 4, v{vLane}")
    I(f"v_and_b32 v{i16}, 15, v{vLane}")
    I(f"v_and_b32 v{t}, 1, v{g}")
    I(f"v_lshlrev_b32 v{vH16}, 4, v{t}")
    I(f"v_lshrrev_b32 v{u}, 1, v{g}")
    I(f"v_lshl_add_u32 v{u}, v{u}, 4, v{i16}")
    I(f"v_lshlrev_b32 v{vRecOff}, 3, v{u}")
    I(f"v_lshrrev_b32 v{u}, 2, v{i16}")
    I(f"v_lshlrev_b32 v{u}, 4, v{u}")
    I(f"v_and_b32 v{vCoefW}, 3, v{i16}")
    I(f"v_lshl_add_u32 v{u}, v{vCoefW}, 1, v{u}")
    I(f"v_lshrrev_b32 v{vCoefW}, 1, v{g}")
    I(f"v_lshl_add_u32 v{u}, v{vCoefW}, 3, v{u}")
    I(f"v_lshl_add_u32 v{u}, v{t}, 6, v{u}")
    I(f"s_lshl_b32 s{sTmp+6}, s{sWave}, 10")
    I(f"s_add_u32 s{sTmp+6}, s{sTmp+6}, {C_COEF}")
    I(f"v_add_u32 v{vCoefW}, s{sTmp+6}, v{u}")
    I(f"v_lshlrev_b32 v{u}, 6, v{i16}")
    I(f"v_lshl_add_u32 v{u}, v{g}, 4, v{u}")
    I(f"v_add_u32 v{vCoefR}, s{sTmp+6}, v{u}")
    I(f"v_mov_b32 v{vZero}, 0")
    I(f"v_and_b32 v{u}, 1, v{vLane}")
    I(f"v_lshlrev_b32 v{vSh}, 4, v{u}")
    I(f"v_lshrrev_b32 v{u}, 1, v{i16}")
    I(f"v_lshlrev_b32 v{u}, 5, v{u}")
    I(f"v_lshl_add_u32 v{vOutOff}, v{g}, 3, v{u}")
    z = vX + 8
    for j in range(4):
        I(f"v_mov_b32 v{z+j}, 0")
    I(f"v_lshlrev_b32 v{u}, 4, v{vLane}")
    I(f"v_add_u32 v{u}, s{sTmp+6}, v{u}")
    I(f"ds_write_b128 v{u}, {vr(z,4)}")
    I(f"v_lshlrev_b32 v{u}, 2, v{vLane}")
    I(f"ds_write_b32 v{u}, v{z} offset:{C_MISC}")
    I(f"v_mov_b32 v{z+4}, 0x3ffff")
    I(f"v_mov_b32 v{z+5}, 0")
    I(f"v_and_b32 v{u}, 31, v{vLane}")
    I(f"v_lshlrev_b32 v{u}, 3, v{u}")
    I(f"ds_write_b64 v{u}, {vr(z+4,2)} offset:{C_SENT}")
    for j in range(20):
        I(f"v_mov_b32 v{vAcc+j}, 0")
    I("s_waitcnt lgkmcnt(0)")
    srd(4, "s84", "s85", T * 4)
    I(f"s_add_u32 s8, s84, {WS_A}")
    I("s_addc_u32 s9, s85, 0")
    I(f"s_mov_b32 s10, {T*2}")
    I("s_mov_b32 s11, 0x20000")
    srd(12, "s80", "s81", E * 32)
    srd(16, "s82", "s83", E * 32)
    I(f"s_add_u32 s20, s84, {WS_TB}")
    I("s_addc_u32 s21, s85, 0")
    I(f"s_mov_b32 s22, {NB*1024}")
    I("s_mov_b32 s23, 0x20000")
    I(f"s_lshl_b32 s{sTmp+6}, s{sWave}, 14")
    I(f"s_lshl_b32 s{sTmp+7}, s2, 2")
    I(f"s_add_u32 s{sTmp+6}, s{sTmp+6}, s{sTmp+7}")
    I(f"v_lshlrev_b32 v{u}, 10, v{vLane}")
    I(f"v_and_b32 v{u}, 0x3fff, v{u}")
    I(f"buffer_load_dword v{vLen}, v{u}, s[20:23], s{sTmp+6} offen")
    wf = vX + 8
    I(f"v_lshlrev_b32 v{u}, 1, v{i16}")
    I(f"v_lshl_add_u32 v{vX+5}, v{t}, 8, v{u}")
    I(f"v_lshl_add_u32 v{vX+6}, v{g}, 7, v{u}")
    I(f"v_lshl_add_u32 v{vX+7}, v{g}, 6, v{u}")
    hi = vRank
    srd(20, "s76", "s77", 512)
    for j in range(8):
        if j & 1: I(f"buffer_load_ushort v{hi + (j>>1)}, v{vX+5}, s[20:23], 0 offen offset:{j*32}")
        else:     I(f"buffer_load_ushort v{vWd1 + (j>>1)}, v{vX+5}, s[20:23], 0 offen offset:{j*32}")
    srd(20, "s74", "s75", 512)
    for j in range(4):
        if j & 1: I(f"buffer_load_ushort v{hi + 4 + (j>>1)}, v{vX+6}, s[20:23], 0 offen offset:{j*32}")
        else:     I(f"buffer_load_ushort v{vWsbf + (j>>1)}, v{vX+6}, s[20:23], 0 offen offset:{j*32}")
    srd(20, "s78", "s79", 512)
    for j in range(4):
        if j & 1: I(f"buffer_load_ushort v{hi + 6 + (j>>1)}, v{vX+6}, s[20:23], 0 offen offset:{j*32}")
        else:     I(f"buffer_load_ushort v{vWup + (j>>1)}, v{vX+6}, s[20:23], 0 offen offset:{j*32}")
    srd(20, "s72", "s73", 256)
    for j in range(2):
        I(f"buffer_load_ushort v{vWrb + j}, v{vX+7}, s[20:23], 0 offen offset:{j*32}")
    srd(20, "s68", "s69", 16)
    I(f"v_lshlrev_b32 v{u}, 2, v{g}")
    I(f"buffer_load_dword v{vCen0}, v{u}, s[20:23], 0 offen")
    srd(20, "s70", "s71", 4)
    I(f"v_lshlrev_b32 v{u}, 1, v{t}")
    I(f"buffer_load_ushort v{vFreq}, v{u}, s[20:23], 0 offen")
    srd(20, "s64", "s65", E * 2)
    I(f"s_mul_i32 s{sTmp+6}, s2, {EB*2}")
    I(f"s_mul_i32 s{sTmp+7}, s{sWave}, 80")
    I(f"s_add_u32 s{sTmp+6}, s{sTmp+6}, s{sTmp+7}")
    I(f"v_lshrrev_b32 v{u}, 1, v{i16}")
    I(f"v_lshlrev_b32 v{u}, 1, v{u}")
    for p in range(5):
        I(f"buffer_load_ushort v{vDist+p}, v{u}, s[20:23], s{sTmp+6} offen offset:{p*16}")
    I(f"s_mul_i32 s{sOutB}, s2, {EB*32}")
    I(f"s_mul_i32 s{sTmp+7}, s{sWave}, 1280")
    I(f"s_add_u32 s{sOutB}, s{sOutB}, s{sTmp+7}")
    for p in range(5):
        I(f"buffer_load_dwordx2 {vr(vMrow+2*p,2)}, v{vOutOff}, s[12:15], s{sOutB} offen offset:{p*256}")
    I(f"s_mov_b32 s{sM18}, 0x3ffff")
    I(f"s_mov_b32 s{sHi}, 0xffff0000")
    I(f"s_mov_b32 s{sBase}, 0")
    I(f"s_mov_b32 s{sRL}, 64")
    I("s_waitcnt vmcnt(22)")
    I(f"s_mul_i32 s{sTmp+6}, s{sWave}, {16*CH*4}")
    I(f"v_mul_u32_u24 v{u}, {CH*4}, v{vLane}")
    I(f"v_add_u32 v{u}, s{sTmp+6}, v{u}")
    I(f"v_and_b32 v{vOffK}, 0xffff, v{vLen}")
    I(f"v_lshl_add_u32 v{vOffK}, v{vOffK}, 2, v{u}")
    I(f"v_lshrrev_b32 v{vLen}, 16, v{vLen}")
    for j in range(4):
        I(f"v_lshl_or_b32 v{vWd1+j}, v{hi+j}, 16, v{vWd1+j}")
    I(f"v_cmp_gt_u32 vcc, 32, v{vLane}")
    I("s_nop 1")
    for j in range(4):
        I(f"v_cndmask_b32 v{vWd2+j}, v{vWd1+j}, v{vZero}, vcc")
    for j in range(4):
        I(f"v_cndmask_b32 v{vWd1+j}, v{vZero}, v{vWd1+j}, vcc")

    L("C_round")
    I(f"v_lshlrev_b32 v{vT}, 2, v0")
    I(f"v_and_b32 v{vT}, 0x3fc, v{vT}")
    I(f"ds_write_b32 v{vT}, v{vZero} offset:{C_CNT}")
    cntv = vT + 1; offv = vT + 2; l4 = vT + 3; l2 = vT + 4; one = vT + 5
    I(f"v_subrev_u32 v{cntv}, s{sBase}, v{vLen}")
    I(f"v_med3_i32 v{cntv}, v{cntv}, 0, s{sRL}")
    I(f"s_lshl_b32 s{sTmp+14}, s{sBase}, 2")
    I(f"v_add_u32 v{offv}, s{sTmp+14}, v{vOffK}")
    I(f"v_lshlrev_b32 v{l4}, 2, v{vLane}")
    I(f"v_lshlrev_b32 v{l2}, 1, v{vLane}")
    I(f"v_mov_b32 v{one}, 1")
    I("s_waitcnt lgkmcnt(0)")
    I("s_barrier")
    I("s_mov_b64 exec, 0xffff")
    I(f"ds_max_u32 v{vZero}, v{vLen} offset:{C_MISC}")
    I("s_mov_b64 exec, -1")
    order = []
    for b in range(4):
        for j in range(4):
            s = 4 * b + j
            I(f"v_readlane_b32 s{sTmp+3*j}, v{offv}, {s}")
            I(f"v_readlane_b32 s{sTmp+3*j+1}, v{cntv}, {s}")
        for j in range(4):
            I(f"s_lshr_b32 s{sTmp+3*j+2}, s{sTmp+3*j}, 1")
        for j in range(4):
            s = 4 * b + j
            I(f"v_cmp_gt_u32_e64 {sr(sMask+2*s,2)}, s{sTmp+3*j+1}, v{vLane}")
        I("s_nop 1")
        for j in range(4):
            s = 4 * b + j
            I(f"s_or_b64 exec, {sr(sMask+2*s,2)}, 1")
            I(f"buffer_load_dword v{vKA+2*s}, v{l4}, s[4:7], s{sTmp+3*j} offen")
            I(f"buffer_load_ushort v{vKA+2*s+1}, v{l2}, s[8:11], s{sTmp+3*j+2} offen")
        I("s_mov_b64 exec, -1")
    I(f"s_cmp_lg_u32 s{sBase}, 0")
    I("s_cbranch_scc1 C_nofix")
    I(f"s_cmp_lg_u32 s{sRL}, 64")
    I("s_cbranch_scc1 C_nofix")
    I("s_waitcnt vmcnt(32)")
    for j in range(2):
        I(f"v_lshl_or_b32 v{vWsbf+j}, v{vRank+4+j}, 16, v{vWsbf+j}")
        I(f"v_lshl_or_b32 v{vWup+j}, v{vRank+6+j}, 16, v{vWup+j}")
        I(f"v_lshl_or_b32 v{vWrb+j}, v{vWrb+j}, 16, v{vWrb+j}")
    I(f"v_and_b32 v{vCen1}, s{sHi}, v{vCen0}")
    I(f"v_lshlrev_b32 v{vCen0}, 16, v{vCen0}")
    I(f"v_lshlrev_b32 v{vFreq}, 16, v{vFreq}")
    I(f"v_mul_f32 v{vFreq}, 0.15915494, v{vFreq}")
    for p in range(5):
        I(f"v_lshlrev_b32 v{vDist+p}, 16, v{vDist+p}")
    L("C_nofix")
    for s in range(16):
        I(f"s_waitcnt vmcnt({2*(15-s)+1})")
        I(f"s_mov_b64 exec, {sr(sMask+2*s,2)}")
        tt = vT + 6 + (s & 3)
        I(f"v_lshlrev_b32_sdwa v{tt}, 2, v{vKA+2*s} dst_sel:DWORD dst_unused:UNUSED_PAD src0_sel:DWORD src1_sel:BYTE_3")
        I("s_nop 0")
        I(f"ds_add_rtn_u32 v{vRank+s}, v{tt}, v{one} offset:{C_CNT}")
    I("s_mov_b64 exec, -1")
    I("s_waitcnt lgkmcnt(0)")
    I("s_barrier")
    c = vT; pc = vT + 4; a16 = vT + 8; tot = vT + 9; x = vT + 10; p2 = vT + 11; p3 = vT + 12; ml = vT + 13
    I(f"v_lshlrev_b32 v{a16}, 4, v{vLane}")
    I(f"ds_read_b128 {vr(c,4)}, v{a16} offset:{C_CNT}")
    I(f"ds_read_b32 v{ml}, v{vZero} offset:{C_MISC}")
    I("s_waitcnt lgkmcnt(0)")
    for j in range(4):
        I(f"v_add_u32 v{pc+j}, 31, v{c+j}")
    for j in range(4):
        I(f"v_and_b32 v{pc+j}, -32, v{pc+j}")
    I(f"v_add_u32 v{p2}, v{pc}, v{pc+1}")
    I(f"v_add_u32 v{p3}, v{p2}, v{pc+2}")
    I(f"v_add_u32 v{tot}, v{p3}, v{pc+3}")
    I(f"v_mov_b32 v{x}, v{tot}")
    wave_scan(x)
    I(f"v_readfirstlane_b32 s{sMaxLen}, v{ml}")
    I("s_nop 0")
    I(f"v_readlane_b32 s{sTmp}, v{x}, 63")
    I(f"v_sub_u32 v{x}, v{x}, v{tot}")
    I(f"v_add_u32 v{pc+1}, v{x}, v{pc}")
    I(f"v_mov_b32 v{pc}, v{x}")
    I(f"v_add_u32 v{pc+2}, v{x}, v{p2}")
    I(f"v_add_u32 v{pc+3}, v{x}, v{p3}")
    I(f"s_mov_b32 s{sTmp+1}, {C_REC}")
    for j in range(4):
        I(f"v_lshl_add_u32 v{pc+j}, v{pc+j}, 3, s{sTmp+1}")
    I(f"s_cmp_le_u32 s{sTmp}, {CAP}")
    I("s_cbranch_scc1 C_fits")
    I(f"s_mov_b32 s{sRL}, 32")
    I("s_waitcnt vmcnt(0)")
    I("s_barrier")
    I("s_branch C_round")
    L("C_fits")
    I(f"ds_write_b128 v{a16}, {vr(pc,4)} offset:{C_ST}")
    I(f"s_add_u32 s{sTmp+2}, s{sBase}, s{sRL}")
    I(f"s_cmp_ge_u32 s{sTmp+2}, s{sMaxLen}")
    I(f"s_cselect_b32 s{sFinal}, 1, 0")
    for s in range(16):
        I(f"v_lshlrev_b32_sdwa v{vT+s}, 2, v{vKA+2*s} dst_sel:DWORD dst_unused:UNUSED_PAD src0_sel:DWORD src1_sel:BYTE_3")
    for s in range(16):
        I(f"ds_read_b32 v{vT+s}, v{vT+s} offset:{C_ST}")
    I("s_waitcnt vmcnt(0)")
    for s in range(16):
        if s == 0: I("s_waitcnt lgkmcnt(8)")
        if s == 8: I("s_waitcnt lgkmcnt(0)")
        I(f"s_mov_b64 exec, {sr(sMask+2*s,2)}")
        I(f"v_lshl_add_u32 v{vT+s}, v{vRank+s}, 3, v{vT+s}")
        I(f"ds_write_b64 v{vT+s}, {vr(vKA+2*s,2)}")
    I("s_mov_b64 exec, -1")
    ba = vT; j31 = vT + 1; sn = vT + 2; cc = vT + 4; aa = vT + 5; sv = vT + 6; tc = vT + 8
    I(f"v_lshrrev_b32 v{ba}, 5, v{vLane}")
    I(f"v_lshlrev_b32 v{ba}, 9, v{ba}")
    I(f"s_mul_i32 s{sTmp+2}, s{sWave}, 20")
    I(f"v_add_u32 v{ba}, s{sTmp+2}, v{ba}")
    I(f"v_add_u32 v{vT+9}, {C_ST}, v{ba}")
    I(f"v_and_b32 v{j31}, 31, v{vLane}")
    I(f"v_mov_b32 v{sv}, 0x3ffff")
    I(f"v_mov_b32 v{sv+1}, 0")
    for p in range(5):
        I(f"ds_read2_b32 {vr(sn,2)}, v{vT+9} offset0:{p} offset1:{p+1}")
        I(f"ds_read_b32 v{cc}, v{ba} offset:{C_CNT + 4*p}")
        I("s_waitcnt lgkmcnt(0)")
        I(f"v_add_u32 v{aa}, v{cc}, v{j31}")
        I(f"v_lshl_add_u32 v{aa}, v{aa}, 3, v{sn}")
        I(f"v_sub_u32 v{tc}, v{sn+1}, v{sn}")
        I(f"v_cmp_lt_u32 vcc, v{aa}, v{sn+1}")
        I(f"v_lshrrev_b32 v{tc}, 8, v{tc}")
        I(f"v_min_u32 v{tc}, {CAP//32}, v{tc}")
        I("s_mov_b64 exec, vcc")
        I(f"ds_write_b64 v{aa}, {vr(sv,2)}")
        I("s_mov_b64 exec, -1")
        I(f"v_readlane_b32 s{sTc+p}, v{tc}, 0")
        I(f"v_readlane_b32 s{sTc+5+p}, v{tc}, 32")
        if p == 0:
            I(f"v_readlane_b32 s{sA0}, v{sn}, 0")
            I(f"v_readlane_b32 s{sA1}, v{sn}, 32")
        if p == 4:
            I(f"v_readlane_b32 s{sE0}, v{sn+1}, 0")
            I(f"v_readlane_b32 s{sE1}, v{sn+1}, 32")
    I("s_waitcnt lgkmcnt(0)")
    I("s_barrier")

    if DBG == 1:
        dbg_sregs([f"s{sTc+k}" for k in range(10)] + [f"s{sA0}", f"s{sE0}", f"s{sA1}", f"s{sE1}", f"s{sMaxLen}", f"s{sFinal}", f"s{sBase}", f"s{sRL}"] + [f"s{sMask+k}" for k in range(8)], vX+10)
    I(f"s_movk_i32 s{sInc}, 256")
    I(f"s_sub_u32 s{sPos}, s{sA0}, 256")
    pre = [vD1, vD1 + 2, vD2, vD2 + 2, vRec]
    for k in range(D + 1):
        advance_pos()
        I(f"v_add_u32 v{vX+2}, s{sPos}, v{vRecOff}")
        I(f"ds_read_b64 {vr(pre[k],2)}, v{vX+2}")
    I("s_waitcnt lgkmcnt(0)")
    for k in range(D):
        issue_tile(k, pre[k])
        I("s_nop 0")
        I(f"v_cvt_pk_bf16_f32 v{vCV+k}, v{vX+1}, v{vX+1}")
    I(f"s_mov_b32 s{sPhase}, 0")
    I(f"s_mov_b32 s{sSlot}, 0")
    I("s_branch C_entry_0_0")

    def block(s, i):
        L(f"C_blk_{s}_{i}")
        I(f"ds_write_b16 v{vCA+s}, v{vCV+s}")
        I(f"ds_read_b128 {vr(vBt,4)}, v{vCoefR}")
        I(f"ds_write_b16 v{vCA+s}, v{vZero}")
        I(f"s_waitcnt vmcnt({D-1}) lgkmcnt(3)")
        I(f"v_mfma_f32_16x16x32_bf16 {vr(vD1,4)}, {vr(vG+4*s,4)}, {vr(vWd1,4)}, 0")
        I(f"v_mfma_f32_16x16x32_bf16 {vr(vD2,4)}, {vr(vG+4*s,4)}, {vr(vWd2,4)}, 0")
        issue_tile(s, vRec)
        advance_pos()
        I(f"v_add_u32 v{vX+2}, s{sPos}, v{vRecOff}")
        I(f"v_cvt_pk_bf16_f32 v{vCV+s}, v{vX+1}, v{vX+1}")
        I(f"ds_read_b64 {vr(vRec,2)}, v{vX+2}")
        I(f"v_cvt_pk_bf16_f32 v{vAp}, v{vD1}, v{vD1+1}")
        I(f"v_cvt_pk_bf16_f32 v{vAp+1}, v{vD1+2}, v{vD1+3}")
        I(f"v_cvt_pk_bf16_f32 v{vAp+2}, v{vD2}, v{vD2+1}")
        I(f"v_cvt_pk_bf16_f32 v{vAp+3}, v{vD2+2}, v{vD2+3}")
        I(f"s_sub_u32 s{sT}, s{sT}, 1")
        I(f"s_waitcnt lgkmcnt(2)")
        I(f"s_cmp_eq_u32 s{sT}, 0")
        I(f"v_mfma_f32_16x16x32_bf16 {vr(vAcc+4*i,4)}, {vr(vAp,4)}, {vr(vBt,4)}, {vr(vAcc+4*i,4)}")
        I(f"s_cbranch_scc1 C_exit_{(s+1)%D}_{i}")

    for i in range(5):
        for s in range(D):
            L(f"C_entry_{s}_{i}")
            I(f"s_mov_b32 s{sT}, s{sTc+i}")
            I(f"s_cmp_eq_u32 s{sT}, 0")
            I(f"s_cbranch_scc1 C_exit_{s}_{i}")
            I(f"s_branch C_blk_{s}_{i}")
        for s in range(D):
            block(s, i)
        I(f"s_branch C_blk_0_{i}")
        for s in range(D):
            L(f"C_exit_{s}_{i}")
            I(f"s_mov_b32 s{sSlot}, {s}")
            I(f"s_branch C_post_{i}")
        L(f"C_post_{i}")
        I(f"s_and_b32 s{sTmp}, s{sPhase}, s{sFinal}")
        I(f"s_cmp_eq_u32 s{sTmp}, 0")
        I(f"s_cbranch_scc1 C_noepi_{i}")
        epilogue(i)
        L(f"C_noepi_{i}")
        nxt = (i + 1) % 5
        if i == 4:
            I(f"s_cmp_eq_u32 s{sPhase}, 1")
            I("s_cbranch_scc1 C_done")
            I(f"s_mov_b32 s{sPhase}, 1")
            for p in range(5):
                I(f"s_mov_b32 s{sTc+p}, s{sTc+5+p}")
        for s in range(D - 1):
            I(f"s_cmp_eq_u32 s{sSlot}, {s}")
            I(f"s_cbranch_scc1 C_entry_{s}_{nxt}")
        I(f"s_branch C_entry_{D-1}_{nxt}")
    L("C_done")
    I("s_waitcnt vmcnt(0) lgkmcnt(0)")
    I(f"s_cmp_lg_u32 s{sFinal}, 0")
    I("s_cbranch_scc1 C_end")
    I(f"s_add_u32 s{sBase}, s{sBase}, s{sRL}")
    I(f"s_mov_b32 s{sRL}, 64")
    I(f"s_mov_b32 s{sTmp+15}, 0")
    I("s_barrier")
    I("s_branch C_round")
    L("C_end")
    I("s_endpgm")

def epilogue(i):
    acc = vAcc + 4 * i
    if DBG == 2 and i == 0:
        dbg_vregs([vWd1, vWd2+1, vWsbf, vWup, vWrb, acc, acc+1, vFreq, vCen0, vDist, vCA, vCV, vG, vRec], vX+10)
    d0 = vX + 2; d1 = vX + 3; p = vX + 4; R = vX + 6; G = vD1; RB = vD2; U = vBt; A = vAp; M = vX + 8
    I(f"v_sub_f32 v{d0}, v{vDist+i}, v{vCen0}")
    I(f"v_sub_f32 v{d1}, v{vDist+i}, v{vCen1}")
    def rnd():
        I(f"v_cvt_pk_bf16_f32 v{p}, v{d0}, v{d1}")
        I(f"v_lshlrev_b32 v{d0}, 16, v{p}")
        I(f"v_and_b32 v{d1}, s{sHi}, v{p}")
    rnd()
    I(f"v_mul_f32 v{d0}, v{d0}, v{d0}")
    I(f"v_mul_f32 v{d1}, v{d1}, v{d1}")
    rnd()
    I(f"v_mul_f32 v{d0}, 0xc1200000, v{d0}")
    I(f"v_mul_f32 v{d1}, 0xc1200000, v{d1}")
    rnd()
    I(f"v_mul_f32 v{d0}, 0x3fb8aa3b, v{d0}")
    I(f"v_mul_f32 v{d1}, 0x3fb8aa3b, v{d1}")
    I(f"v_exp_f32 v{d0}, v{d0}")
    I(f"v_exp_f32 v{d1}, v{d1}")
    I("s_nop 0")
    I(f"v_cvt_pk_bf16_f32 v{p}, v{d0}, v{d1}")
    I(f"v_and_b32 v{R}, 0xffff, v{p}")
    I(f"v_lshrrev_b32 v{R+1}, 16, v{p}")
    I(f"v_lshlrev_b32 v{R}, v{vSh}, v{R}")
    I(f"v_lshlrev_b32 v{R+1}, v{vSh}, v{R+1}")
    I("s_nop 1")
    I(f"v_mfma_f32_16x16x16_bf16 {vr(G,4)}, {vr(vWsbf,2)}, {vr(R,2)}, 0")
    I(f"v_mfma_f32_16x16x16_bf16 {vr(RB,4)}, {vr(vWrb,2)}, {vr(R,2)}, 0")
    I(f"v_lshlrev_b32 v{M}, 16, v{vMrow+2*i}")
    I(f"v_and_b32 v{M+1}, s{sHi}, v{vMrow+2*i}")
    I(f"v_lshlrev_b32 v{M+2}, 16, v{vMrow+2*i+1}")
    I(f"v_and_b32 v{M+3}, s{sHi}, v{vMrow+2*i+1}")
    I("s_nop 4")
    for j in range(4):
        I(f"v_mul_f32 v{G+j}, v{G+j}, v{acc+j}")
    I("s_nop 0")
    for j in range(4):
        I(f"v_add_f32_dpp v{A+j}, v{G+j}, v{G+j} quad_perm:[1,0,3,2] row_mask:0xf bank_mask:0xf")
    I(f"v_cvt_pk_bf16_f32 v{R}, v{A}, v{A+1}")
    I(f"v_cvt_pk_bf16_f32 v{R+1}, v{A+2}, v{A+3}")
    I("s_nop 1")
    I(f"v_mfma_f32_16x16x16_bf16 {vr(U,4)}, {vr(vWup,2)}, {vr(R,2)}, 0")
    I("s_nop 7")
    for j in range(4):
        I(f"v_fma_f32 v{M+j}, v{U+j}, v{RB+j}, v{M+j}")
    I(f"v_cvt_pk_bf16_f32 v{R}, v{M}, v{M+1}")
    I(f"v_cvt_pk_bf16_f32 v{R+1}, v{M+2}, v{M+3}")
    I("s_mov_b32 exec_lo, 0x55555555")
    I("s_mov_b32 exec_hi, 0x55555555")
    I(f"buffer_store_dwordx2 {vr(R,2)}, v{vOutOff}, s[16:19], s{sOutB} offen offset:{i*256}")
    I("s_mov_b64 exec, -1")

def main():
    KP = NAME + "_part_kernel"
    KC = NAME + "_kernel"
    header([(KP, NB, 1024, P_LDS), (KC, NB, 1024, C_LDS)])
    r = gen_P(KP)
    gen_P_rest(*r)
    gen_C(KC)
    out.append('.section .rodata,"a"')
    out.append(".p2align 6")
    kdesc(KP, 80)
    out.append(".p2align 6")
    kdesc(KC, 128)
    open(f"cdna_kernels/{NAME}.s", "w").write("\n".join(out) + "\n")

main()
```

```python
import os
import sys

NAME = "standalone__molecular_angular_gemnet__graph"
E = 160000
T = 2560000
NB = 250
CH = 10240
EB = 640

WS_G = 0
WS_TB = 4096
WS_TBEND = WS_TB + NB * 2048
WS_IMG = 1 << 20
IMG_STRIDE = 65536

L_CUR = 0
L_INIT = 1280
L_MISC = 2560
L_SENT = L_MISC + 32
L_COEF = 2688
L_REC = L_COEF + 16384
GSZ = 1792
L_END = L_REC + 80 * GSZ
P_CNT = L_REC
P_ST = L_REC + 1024
P_ENT = L_REC + 2048
P_IMG = L_REC + 3072

DBG = int(os.environ.get("DBG", "0"))
OUTF = os.environ.get("OUTF", f"cdna_kernels/{NAME}.s")
PFA = int(os.environ.get("PFA", "1"))
PFB = int(os.environ.get("PFB", "1"))
STEPBAR = int(os.environ.get("STEPBAR", "1"))
FORCESLOW = int(os.environ.get("FORCESLOW", "0"))
out = []


def I(s): out.append("    " + s)
def L(s): out.append(s + ":")
def C(s): out.append("    ; " + s)
def vr(a, n): return "v[%d:%d]" % (a, a + n - 1)
def sr(a, n): return "s[%d:%d]" % (a, a + n - 1)


def srd(d, lo, hi, nbytes):
    I(f"s_mov_b32 s{d}, {lo}")
    I(f"s_mov_b32 s{d+1}, {hi}")
    I(f"s_mov_b32 s{d+2}, {nbytes}")
    I(f"s_mov_b32 s{d+3}, 0x20000")


STAMPV = 13
def stamp(idx):
    if DBG != 3: return
    I("s_memrealtime s[100:101]")
    I("s_waitcnt lgkmcnt(0)")
    I(f"v_writelane_b32 v{STAMPV}, s100, {idx}")


def stamp_flush(region, lanev):
    if DBG != 3: return
    I("s_load_dwordx2 s[90:91], s[0:1], 104")
    I("s_waitcnt lgkmcnt(0)")
    srd(20, "s90", "s91", 268435456)
    I("s_lshl_b32 s99, s2, 4")
    I(f"s_add_u32 s99, s99, s{sWave}")
    I("s_lshl_b32 s99, s99, 8")
    I(f"s_add_u32 s99, s99, {region}")
    I(f"v_lshlrev_b32 v{lanev}, 2, v{vLane}")
    I(f"buffer_store_dword v{STAMPV}, v{lanev}, s[20:23], s99 offen")
    I("s_waitcnt vmcnt(0)")


def wave_scan(x):
    for sh in (1, 2, 4, 8):
        I("s_nop 1")
        I(f"v_add_u32_dpp v{x}, v{x}, v{x} row_shr:{sh} row_mask:0xf bank_mask:0xf bound_ctrl:0")
    I("s_nop 1")
    I(f"v_add_u32_dpp v{x}, v{x}, v{x} row_bcast:15 row_mask:0xa bank_mask:0xf")
    I("s_nop 1")
    I(f"v_add_u32_dpp v{x}, v{x}, v{x} row_bcast:31 row_mask:0xc bank_mask:0xf")


class VM:
    def __init__(self): self.q = []
    def add(self, tag): self.q.append(tag)
    def wait(self, tag, extra=""):
        idx = max(i for i, t in enumerate(self.q) if t == tag)
        n = len(self.q) - 1 - idx
        assert n < 64
        I(f"s_waitcnt vmcnt({n}){extra}")


def header(name, g, b, lds):
    out.append(open("header.txt").read().rstrip("\n"))
    out.append(f"; @launch grid=({g},1,1) block=({b},1,1) lds={lds}")
    out.append('.amdgcn_target "amdgcn-amd-amdhsa--gfx950"')
    out.append(".text")


def kstart(name):
    out.append(f".globl {name}")
    out.append(".p2align 8")
    out.append(f".type {name},@function")
    L(name)


def kdesc(name, vgpr, sgpr=102):
    out.append(f".amdhsa_kernel {name}")
    out.append(f"  .amdhsa_next_free_vgpr {vgpr}")
    out.append(f"  .amdhsa_next_free_sgpr {sgpr}")
    out.append(f"  .amdhsa_accum_offset {(vgpr + 3) // 4 * 4}")
    out.append("  .amdhsa_group_segment_fixed_size 0")
    out.append("  .amdhsa_kernarg_size 112")
    out.append("  .amdhsa_user_sgpr_count 2")
    out.append("  .amdhsa_user_sgpr_kernarg_segment_ptr 1")
    out.append("  .amdhsa_system_sgpr_workgroup_id_x 1")
    out.append(".end_amdhsa_kernel")


vLane = 1; vH16 = 2; vRecOff = 3; vCoefW = 4; vCoefR = 5; vFreq = 6; vZero = 7
vCen0 = 8; vCen1 = 9; vSh = 10; vOutOff = 11; vEnt = 12
vWsbf = 14; vWup = 16; vWrb = 18
vWd1 = 20; vWd2 = 24
vAcc = 28
vDist = 48
vRO = 53
vMrow = 54
pO = 64; pIN = 74; pAN = 84; pB4 = 90; pRK = 100
pA16 = 110; pA8 = 111; pA4 = 112; pT = 113
pHi = vAcc
pE4 = vAcc + 8
pS = vAcc + 12
bR = 64
bX = 96
bE = 104
bT = 112
vG = 64
vCA = 84; vCV = 89
vBt = 96; vD1 = 100; vD2 = 104; vAp = 108
vRec = 112
vX = 114

sWave = 3
sB = 24; sNonce = 25; sTag = 26; sSlow = 27; sRound = 28; sMaxCnt = 29; sJ = 30; sS = 31
sOutB = 32; sME0 = 33; sHi = 34; sHiB = 35; sHasX = 36; sOOB = 37; sPf = 38; sValid = 39
sMask = 40
sGA = 40
sA0 = 40; sT1 = 45; sD1 = 50; sT3 = 55; sD3 = 60; sN = 65; sSt = 70
sT = 80


def chain(p, dst, a):
    I(f"v_add_u32 v{a}, s{sA0+p}, v{vRO}")
    I(f"v_cmpx_le_u32 vcc, s{sT1+p}, v{a}")
    I(f"v_add_u32 v{a}, s{sD1+p}, v{a}")
    I(f"v_cmpx_le_u32 vcc, s{sT3+p}, v{a}")
    I(f"v_add_u32 v{a}, s{sD3+p}, v{a}")
    I(f"v_cmpx_le_u32 vcc, s{sN+p}, v{a}")
    I(f"v_mov_b32 v{a}, {L_SENT}")
    I("s_mov_b64 exec, -1")
    I(f"ds_read_b64 {vr(dst,2)}, v{a}")


def issue_tile(p, rec, t, a):
    I(f"v_lshrrev_b32 v{t}, 9, v{rec}")
    I(f"v_and_or_b32 v{t}, v{t}, s{sME0}, v{vH16}")
    I(f"buffer_load_dwordx4 {vr(vG+4*p,4)}, v{t}, s[12:15], 0 offen")
    I(f"v_mul_f32 v{a}, v{rec+1}, v{vFreq}")
    I(f"v_bfe_u32 v{vCA+p}, v{rec}, 11, 3")
    I(f"v_fract_f32 v{a}, v{a}")
    I(f"v_lshl_add_u32 v{vCA+p}, v{vCA+p}, 7, v{vCoefW}")
    I(f"v_cos_f32 v{a}, v{a}")


def epilogue(i):
    acc = vAcc + 4 * i
    d0 = vX + 2; d1 = vX + 3; p = vX + 4; R = vX + 6; G = vD1; RB = vD2; U = vBt; A = vAp; M = vX + 8
    I(f"v_sub_f32 v{d0}, v{vDist+i}, v{vCen0}")
    I(f"v_sub_f32 v{d1}, v{vDist+i}, v{vCen1}")
    def rnd():
        I(f"v_cvt_pk_bf16_f32 v{p}, v{d0}, v{d1}")
        I(f"v_lshlrev_b32 v{d0}, 16, v{p}")
        I(f"v_and_b32 v{d1}, s{sHi}, v{p}")
    rnd()
    I(f"v_mul_f32 v{d0}, v{d0}, v{d0}")
    I(f"v_mul_f32 v{d1}, v{d1}, v{d1}")
    rnd()
    I(f"v_mul_f32 v{d0}, 0xc1200000, v{d0}")
    I(f"v_mul_f32 v{d1}, 0xc1200000, v{d1}")
    rnd()
    I(f"v_mul_f32 v{d0}, 0x3fb8aa3b, v{d0}")
    I(f"v_mul_f32 v{d1}, 0x3fb8aa3b, v{d1}")
    I(f"v_exp_f32 v{d0}, v{d0}")
    I(f"v_exp_f32 v{d1}, v{d1}")
    I("s_nop 0")
    I(f"v_cvt_pk_bf16_f32 v{p}, v{d0}, v{d1}")
    I(f"v_and_b32 v{R}, 0xffff, v{p}")
    I(f"v_lshrrev_b32 v{R+1}, 16, v{p}")
    I(f"v_lshlrev_b32 v{R}, v{vSh}, v{R}")
    I(f"v_lshlrev_b32 v{R+1}, v{vSh}, v{R+1}")
    I("s_nop 1")
    I(f"v_mfma_f32_16x16x16_bf16 {vr(G,4)}, {vr(vWsbf,2)}, {vr(R,2)}, 0")
    I(f"v_mfma_f32_16x16x16_bf16 {vr(RB,4)}, {vr(vWrb,2)}, {vr(R,2)}, 0")
    I(f"v_lshlrev_b32 v{M}, 16, v{vMrow+2*i}")
    I(f"v_and_b32 v{M+1}, s{sHi}, v{vMrow+2*i}")
    I(f"v_lshlrev_b32 v{M+2}, 16, v{vMrow+2*i+1}")
    I(f"v_and_b32 v{M+3}, s{sHi}, v{vMrow+2*i+1}")
    I("s_nop 4")
    for j in range(4):
        I(f"v_mul_f32 v{G+j}, v{G+j}, v{acc+j}")
    I("s_nop 0")
    for j in range(4):
        I(f"v_add_f32_dpp v{A+j}, v{G+j}, v{G+j} quad_perm:[1,0,3,2] row_mask:0xf bank_mask:0xf")
    I(f"v_cvt_pk_bf16_f32 v{R}, v{A}, v{A+1}")
    I(f"v_cvt_pk_bf16_f32 v{R+1}, v{A+2}, v{A+3}")
    I("s_nop 1")
    I(f"v_mfma_f32_16x16x16_bf16 {vr(U,4)}, {vr(vWup,2)}, {vr(R,2)}, 0")
    I("s_nop 7")
    for j in range(4):
        I(f"v_fma_f32 v{M+j}, v{U+j}, v{RB+j}, v{M+j}")
    I(f"v_cvt_pk_bf16_f32 v{R}, v{M}, v{M+1}")
    I(f"v_cvt_pk_bf16_f32 v{R+1}, v{M+2}, v{M+3}")
    I("s_mov_b32 exec_lo, 0x55555555")
    I("s_mov_b32 exec_hi, 0x55555555")
    I(f"buffer_store_dwordx2 {vr(R,2)}, v{vOutOff}, s[16:19], s{sOutB} offen offset:{i*256}")
    I("s_mov_b64 exec, -1")


def gen(name):
    vm = VM()
    kstart(name)
    I(f"s_cmp_ge_u32 s2, {NB}")
    I("s_cbranch_scc1 K_end")
    if DBG == 3: I(f"v_mov_b32 v{STAMPV}, 0")
    stamp(0)
    I("s_load_dwordx8 s[40:47], s[0:1], 0")
    I("s_load_dwordx16 s[48:63], s[0:1], 32")
    I("s_load_dwordx2 s[64:65], s[0:1], 104")
    I(f"v_lshlrev_b32 v{pA16}, 4, v0")
    I(f"v_lshlrev_b32 v{pA8}, 3, v0")
    I(f"v_lshlrev_b32 v{pA4}, 2, v0")
    I(f"v_and_b32 v{vLane}, 63, v0")
    I(f"v_lshrrev_b32 v{pT}, 6, v0")
    I(f"v_mov_b32 v{vZero}, 0")
    I(f"v_readfirstlane_b32 s{sWave}, v{pT}")
    I(f"v_and_b32 v{pT+1}, 0x3fc, v{pA4}")
    I(f"ds_write_b32 v{pT+1}, v{vZero} offset:{P_CNT}")
    I(f"s_mul_i32 s{sT}, s2, {CH*4}")
    I(f"s_mul_i32 s{sT+3}, s2, {CH*2}")
    I(f"s_add_u32 s{sT+1}, s{sT}, 16384")
    I(f"s_add_u32 s{sT+2}, s{sT}, 32768")
    I(f"s_add_u32 s{sT+4}, s{sT+3}, 8192")
    I(f"s_add_u32 s{sT+5}, s{sT+3}, 16384")
    I("s_waitcnt lgkmcnt(0)")
    srd(20, "s44", "s45", T * 4)
    I(f"buffer_load_dwordx4 {vr(pO,4)}, v{pA16}, s[20:23], s{sT} offen nt"); vm.add("o0")
    I(f"buffer_load_dwordx4 {vr(pO+4,4)}, v{pA16}, s[20:23], s{sT+1} offen nt"); vm.add("o1")
    I(f"buffer_load_dwordx2 {vr(pO+8,2)}, v{pA8}, s[20:23], s{sT+2} offen nt"); vm.add("o2")
    I(f"s_load_dword s{sNonce}, s[64:65], {WS_G}")
    I(f"s_add_u32 s4, s64, {WS_IMG}")
    I("s_addc_u32 s5, s65, 0")
    I(f"s_mov_b32 s6, {NB*IMG_STRIDE}")
    I("s_mov_b32 s7, 0x20000")
    srd(8, "s64", "s65", WS_TBEND)
    srd(12, "s40", "s41", E * 32)
    srd(16, "s62", "s63", E * 32)
    I(f"s_and_b32 s{sT+6}, s2, 7")
    I(f"s_lshr_b32 s{sT+7}, s2, 3")
    I(f"s_mul_i32 s{sB}, s{sT+6}, 31")
    I(f"s_add_u32 s{sB}, s{sB}, s{sT+7}")
    I(f"s_min_u32 s{sT+6}, s{sT+6}, 2")
    I(f"s_add_u32 s{sB}, s{sB}, s{sT+6}")
    g = pT + 1; i16 = pT + 2; t = pT + 3; u = pT + 4; w5 = pT + 5; w6 = pT + 6; w7 = pT + 7
    I(f"v_lshrrev_b32 v{g}, 4, v{vLane}")
    I(f"v_and_b32 v{i16}, 15, v{vLane}")
    I(f"v_and_b32 v{t}, 1, v{g}")
    I(f"v_lshlrev_b32 v{vH16}, 4, v{t}")
    I(f"v_lshrrev_b32 v{u}, 1, v{g}")
    I(f"v_lshl_add_u32 v{u}, v{u}, 4, v{i16}")
    I(f"v_lshlrev_b32 v{vRecOff}, 3, v{u}")
    I(f"v_lshrrev_b32 v{u}, 2, v{i16}")
    I(f"v_lshlrev_b32 v{u}, 4, v{u}")
    I(f"v_and_b32 v{vCoefW}, 3, v{i16}")
    I(f"v_lshl_add_u32 v{u}, v{vCoefW}, 1, v{u}")
    I(f"v_lshrrev_b32 v{vCoefW}, 1, v{g}")
    I(f"v_lshl_add_u32 v{u}, v{vCoefW}, 3, v{u}")
    I(f"v_lshl_add_u32 v{u}, v{t}, 6, v{u}")
    I(f"s_lshl_b32 s{sT+6}, s{sWave}, 10")
    I(f"s_add_u32 s{sT+6}, s{sT+6}, {L_COEF}")
    I(f"v_add_u32 v{vCoefW}, s{sT+6}, v{u}")
    I(f"v_lshlrev_b32 v{u}, 6, v{i16}")
    I(f"v_lshl_add_u32 v{u}, v{g}, 4, v{u}")
    I(f"v_add_u32 v{vCoefR}, s{sT+6}, v{u}")
    I(f"v_and_b32 v{u}, 1, v{vLane}")
    I(f"v_lshlrev_b32 v{vSh}, 4, v{u}")
    I(f"v_lshrrev_b32 v{u}, 1, v{i16}")
    I(f"v_lshlrev_b32 v{u}, 5, v{u}")
    I(f"v_lshl_add_u32 v{vOutOff}, v{g}, 3, v{u}")
    z = pT + 8
    z = pT + 9
    for j in range(4):
        I(f"v_mov_b32 v{z+j}, 0")
    I(f"v_lshlrev_b32 v{u}, 4, v{vLane}")
    I(f"v_add_u32 v{u}, s{sT+6}, v{u}")
    I(f"ds_write_b128 v{u}, {vr(z,4)}")
    I(f"v_mov_b32 v{z}, 0xffffc000")
    I(f"ds_write_b32 v{vZero}, v{vZero} offset:{L_MISC}")
    I(f"ds_write_b32 v{vZero}, v{vZero} offset:{L_MISC+4}")
    I(f"ds_write_b64 v{vZero}, {vr(z,2)} offset:{L_SENT}")
    I(f"v_mul_u32_u24 v{z}, {GSZ}, v0")
    I(f"v_add_u32 v{z}, {L_REC}, v{z}")
    I(f"v_add_u32 v{z+1}, {GSZ//2-8}, v{z}")
    I(f"v_add_u32 v{z+2}, {GSZ//2}, v{z}")
    I(f"v_add_u32 v{z+3}, {GSZ-8}, v{z}")
    I("v_cmp_gt_u32 vcc, 80, v0")
    I(f"s_and_saveexec_b64 {sr(sT+8,2)}, vcc")
    I(f"ds_write_b128 v{pA16}, {vr(z,4)} offset:{L_CUR}")
    I(f"ds_write_b128 v{pA16}, {vr(z,4)} offset:{L_INIT}")
    I("s_mov_b64 exec, -1")
    I(f"v_lshlrev_b32 v{u}, 1, v{i16}")
    I(f"v_lshl_add_u32 v{w5}, v{t}, 8, v{u}")
    I(f"v_lshl_add_u32 v{w6}, v{g}, 7, v{u}")
    I(f"v_lshl_add_u32 v{w7}, v{g}, 6, v{u}")
    I("s_waitcnt lgkmcnt(0)")
    stamp(1)
    I("s_barrier")
    srd(20, "s42", "s43", T * 4)
    I(f"buffer_load_dwordx4 {vr(pIN,4)}, v{pA16}, s[20:23], s{sT} offen nt"); vm.add("i0")
    I(f"buffer_load_dwordx4 {vr(pIN+4,4)}, v{pA16}, s[20:23], s{sT+1} offen nt"); vm.add("i1")
    I(f"buffer_load_dwordx2 {vr(pIN+8,2)}, v{pA8}, s[20:23], s{sT+2} offen nt"); vm.add("i2")
    srd(20, "s48", "s49", T * 2)
    I(f"buffer_load_dwordx2 {vr(pAN,2)}, v{pA8}, s[20:23], s{sT+3} offen nt"); vm.add("a0")
    I(f"buffer_load_dwordx2 {vr(pAN+2,2)}, v{pA8}, s[20:23], s{sT+4} offen nt"); vm.add("a1")
    I(f"buffer_load_dword v{pAN+4}, v{pA4}, s[20:23], s{sT+5} offen nt"); vm.add("a2")
    srd(20, "s58", "s59", 512)
    for j in range(8):
        d = pHi + (j >> 1) if j & 1 else vWd1 + (j >> 1)
        I(f"buffer_load_ushort v{d}, v{w5}, s[20:23], 0 offen offset:{j*32}"); vm.add("w")
    srd(20, "s56", "s57", 512)
    for j in range(4):
        d = pHi + 4 + (j >> 1) if j & 1 else vWsbf + (j >> 1)
        I(f"buffer_load_ushort v{d}, v{w6}, s[20:23], 0 offen offset:{j*32}"); vm.add("w")
    srd(20, "s60", "s61", 512)
    for j in range(4):
        d = pHi + 6 + (j >> 1) if j & 1 else vWup + (j >> 1)
        I(f"buffer_load_ushort v{d}, v{w6}, s[20:23], 0 offen offset:{j*32}"); vm.add("w")
    srd(20, "s54", "s55", 256)
    for j in range(2):
        I(f"buffer_load_ushort v{vWrb + j}, v{w7}, s[20:23], 0 offen offset:{j*32}"); vm.add("w")
    srd(20, "s50", "s51", 16)
    I(f"v_lshlrev_b32 v{u}, 2, v{g}")
    I(f"buffer_load_dword v{vCen0}, v{u}, s[20:23], 0 offen"); vm.add("w")
    srd(20, "s52", "s53", 4)
    I(f"v_lshlrev_b32 v{u}, 1, v{t}")
    I(f"buffer_load_ushort v{vFreq}, v{u}, s[20:23], 0 offen"); vm.add("w")
    srd(20, "s46", "s47", E * 2)
    I(f"s_mul_i32 s{sT+6}, s{sB}, {EB*2}")
    I(f"s_mul_i32 s{sT+7}, s{sWave}, 80")
    I(f"s_add_u32 s{sT+6}, s{sT+6}, s{sT+7}")
    I(f"v_lshrrev_b32 v{u}, 1, v{i16}")
    I(f"v_lshlrev_b32 v{u}, 1, v{u}")
    for p in range(5):
        I(f"buffer_load_ushort v{vDist+p}, v{u}, s[20:23], s{sT+6} offen offset:{p*16}"); vm.add("w")
    I(f"s_mul_i32 s{sOutB}, s{sB}, {EB*32}")
    I(f"s_mul_i32 s{sT+7}, s{sWave}, 1280")
    I(f"s_add_u32 s{sOutB}, s{sOutB}, s{sT+7}")
    for p in range(5):
        I(f"buffer_load_dwordx2 {vr(vMrow+2*p,2)}, v{vOutOff}, s[12:15], s{sOutB} offen offset:{p*256}"); vm.add("w")
    I(f"s_add_u32 s{sNonce}, s{sNonce}, 0x9e3779b9")
    I(f"s_mul_i32 s{sTag}, s{sNonce}, 0x85ebca6b")
    I(f"s_and_b32 s{sTag}, s{sTag}, 0xf8000000")
    I(f"s_mov_b32 s{sME0}, 0xffffffe0")
    I(f"s_mov_b32 s{sHi}, 0xffff0000")
    I(f"s_mov_b32 s{sHiB}, {L_END-8}")
    I(f"s_mov_b32 s{sOOB}, {E*32}")
    I(f"s_mov_b32 s{sSlow}, {FORCESLOW}")
    I(f"s_mov_b32 s{sRound}, 0")
    I(f"s_movk_i32 s{sT+8}, 0xff60")
    one = pT + 14
    I(f"v_mov_b32 v{one}, 1")
    B4 = list(range(pB4, pB4 + 10)); RK = list(range(pRK, pRK + 10))
    O = list(range(pO, pO + 10)); IN = list(range(pIN, pIN + 10))
    for tag, ks in (("o0", [0, 1, 2, 3]), ("o1", [4, 5, 6, 7]), ("o2", [8, 9])):
        vm.wait(tag)
        for k in ks: I(f"v_lshrrev_b32 v{B4[k]}, 7, v{O[k]}")
        for k in ks: I(f"v_mul_u32_u24 v{B4[k]}, 0xcccd, v{B4[k]}")
        for k in ks: I(f"v_lshrrev_b32 v{B4[k]}, 16, v{B4[k]}")
        for k in ks: I(f"v_and_b32 v{B4[k]}, -4, v{B4[k]}")
        for k in ks: I(f"ds_add_rtn_u32 v{RK[k]}, v{B4[k]}, v{one} offset:{P_CNT}")
        for k in ks: I(f"v_mad_i32_i24 v{O[k]}, v{B4[k]}, s{sT+8}, v{O[k]}")
        for k in ks: I(f"v_mul_u32_u24 v{O[k]}, 0x802, v{O[k]}")
        for k in ks: I(f"v_and_b32 v{O[k]}, 0x3ff0, v{O[k]}")
    I("s_waitcnt lgkmcnt(0)")
    stamp(2)
    I("s_barrier")
    stamp(3)
    c = pT + 1
    a16 = pT; pp = pS; x = pS + 4; tot = pS + 5; p2 = pS + 6; p3 = pS + 7
    st = pT + 5
    ad = pT + 9
    I(f"v_lshlrev_b32 v{a16}, 4, v{vLane}")
    I(f"ds_read_b128 {vr(c,4)}, v{a16} offset:{P_CNT}")
    I("s_waitcnt lgkmcnt(0)")
    for j in range(4): I(f"v_add_u32 v{pp+j}, 1, v{c+j}")
    for j in range(4): I(f"v_lshrrev_b32 v{pp+j}, 1, v{pp+j}")
    I(f"v_add_u32 v{p2}, v{pp}, v{pp+1}")
    I(f"v_add_u32 v{p3}, v{p2}, v{pp+2}")
    I(f"v_add_u32 v{tot}, v{p3}, v{pp+3}")
    I(f"v_mov_b32 v{x}, v{tot}")
    wave_scan(x)
    I(f"v_sub_u32 v{st}, v{x}, v{tot}")
    I(f"v_readlane_b32 s{sT+9}, v{x}, 63")
    I(f"v_add_u32 v{st+1}, v{st}, v{pp}")
    I(f"v_add_u32 v{st+2}, v{st}, v{p2}")
    I(f"v_add_u32 v{st+3}, v{st}, v{p3}")
    I(f"s_movk_i32 s{sT+10}, {P_IMG}")
    for j in range(4):
        I(f"v_mad_u32_u24 v{ad+j}, v{st+j}, 12, s{sT+10}")
    I(f"ds_write_b128 v{a16}, {vr(ad,4)} offset:{P_ST}")
    for j in range(4):
        I(f"v_lshl_or_b32 v{c+j}, v{c+j}, 13, v{st+j}")
    for j in range(4):
        I(f"v_or_b32 v{c+j}, s{sTag}, v{c+j}")
    I(f"ds_write_b128 v{a16}, {vr(c,4)} offset:{P_ENT}")
    for k in range(10):
        I(f"ds_read_b32 v{B4[k]}, v{B4[k]} offset:{P_ST}")
    I(f"v_lshlrev_b32 v{a16}, 3, v{vLane}")
    I(f"ds_read_b64 {vr(pE4,2)}, v{a16} offset:{P_ENT}")
    I(f"ds_read_b64 {vr(pE4+2,2)}, v{a16} offset:{P_ENT+512}")
    for k in range(10):
        if k == 0: vm.wait("i0")
        if k == 4: vm.wait("i1")
        if k == 8: vm.wait("i2")
        q = pT + 1 + (k & 3)
        I(f"v_mul_u32_u24 v{q}, 26843, v{IN[k]}")
        I(f"v_lshl_or_b32 v{IN[k]}, v{IN[k]}, 14, v{O[k]}")
        I(f"v_lshrrev_b32 v{q}, 28, v{q}")
        I(f"v_and_or_b32 v{IN[k]}, v{q}, 12, v{IN[k]}")
    I("s_waitcnt lgkmcnt(0)")
    for k in range(10):
        I(f"v_mad_u32_u24 v{B4[k]}, v{RK[k]}, 6, v{B4[k]}")
    for k in range(10):
        I(f"v_and_b32 v{RK[k]}, 1, v{RK[k]}")
    for k in range(10):
        I(f"v_mad_i32_i24 v{O[k]}, v{RK[k]}, -2, v{B4[k]}")
    for k in range(10):
        I(f"ds_write_b32 v{O[k]}, v{IN[k]}")
    for k in range(10):
        I(f"v_mad_i32_i24 v{B4[k]}, v{RK[k]}, -4, v{B4[k]}")
    vm.wait("a2")
    for k in range(10):
        op = "ds_write_b16_d16_hi" if (k & 1) else "ds_write_b16"
        I(f"{op} v{B4[k]}, v{pAN + (k >> 1)} offset:8")
    I(f"s_lshl_b32 s{sT+10}, s2, 16")
    I(f"s_add_u32 s20, s4, s{sT+10}")
    I("s_addc_u32 s21, s5, 0")
    I(f"s_mul_i32 s22, s{sT+9}, 12")
    I("s_add_u32 s22, s22, 15")
    I("s_and_b32 s22, s22, 0xfffffff0")
    I("s_mov_b32 s23, 0x20000")
    I("s_waitcnt vmcnt(0)")
    for j in range(4):
        I(f"v_lshl_or_b32 v{vWd1+j}, v{pHi+j}, 16, v{vWd1+j}")
    I(f"v_cmp_gt_u32 vcc, 32, v{vLane}")
    for j in range(2):
        I(f"v_lshl_or_b32 v{vWsbf+j}, v{pHi+4+j}, 16, v{vWsbf+j}")
        I(f"v_lshl_or_b32 v{vWup+j}, v{pHi+6+j}, 16, v{vWup+j}")
        I(f"v_lshl_or_b32 v{vWrb+j}, v{vWrb+j}, 16, v{vWrb+j}")
    for j in range(4):
        I(f"v_cndmask_b32 v{vWd2+j}, v{vWd1+j}, v{vZero}, vcc")
    for j in range(4):
        I(f"v_cndmask_b32 v{vWd1+j}, v{vZero}, v{vWd1+j}, vcc")
    I(f"v_and_b32 v{vCen1}, s{sHi}, v{vCen0}")
    I(f"v_lshlrev_b32 v{vCen0}, 16, v{vCen0}")
    I(f"v_lshlrev_b32 v{vFreq}, 16, v{vFreq}")
    I(f"v_mul_f32 v{vFreq}, 0.15915494, v{vFreq}")
    for p in range(5):
        I(f"v_lshlrev_b32 v{vDist+p}, 16, v{vDist+p}")
    I("s_waitcnt lgkmcnt(0)")
    stamp(4)
    I("s_barrier")
    stamp(5)
    I(f"v_add_u32 v{pA8}, {P_IMG}, v{pA16}")
    for r in range(4):
        I(f"ds_read_b128 {vr(64+4*r,4)}, v{pA8} offset:{r*16384}")
    for r in range(4):
        I(f"s_waitcnt lgkmcnt({3-r})")
        if r == 0:
            I(f"buffer_store_dwordx4 {vr(64,4)}, v{pA16}, s[20:23], 0 offen sc1")
        else:
            I(f"s_mov_b32 s{sT+10}, {r*16384}")
            I(f"buffer_store_dwordx4 {vr(64+4*r,4)}, v{pA16}, s[20:23], s{sT+10} offen sc1")
    stamp(6)
    pub = 80
    I(f"v_mov_b32 v{pub}, v{pE4}")
    I(f"v_mov_b32 v{pub+1}, s{sNonce}")
    I(f"v_mov_b32 v{pub+2}, v{pE4+1}")
    I(f"v_mov_b32 v{pub+3}, s{sNonce}")
    I(f"v_mov_b32 v{pub+4}, v{pE4+2}")
    I(f"v_mov_b32 v{pub+5}, s{sNonce}")
    I(f"v_mov_b32 v{pub+6}, v{pE4+3}")
    I(f"v_mov_b32 v{pub+7}, s{sNonce}")
    I(f"v_lshlrev_b32 v{pub+8}, 4, v{vLane}")
    for j in range(20):
        I(f"v_mov_b32 v{vAcc+j}, 0")
    pa = pub + 9; pd = pub + 10
    I(f"v_lshlrev_b32 v{pa}, 11, v{vLane}")
    I(f"s_lshl_b32 s{sT}, s{sWave}, 15")
    I(f"s_lshl_b32 s{sT+1}, s{sB}, 3")
    I(f"s_add_u32 s{sT}, s{sT}, s{sT+1}")
    I(f"s_add_u32 s{sT}, s{sT}, {WS_TB}")
    I(f"s_lshl_b32 s{sT+1}, s{sWave}, 4")
    I(f"s_sub_u32 s{sT+1}, {NB}, s{sT+1}")
    I(f"s_min_u32 s{sT+1}, s{sT+1}, 16")
    I(f"s_bfm_b32 s{sValid}, s{sT+1}, 0")
    I(f"v_mov_b32 v{vEnt}, 0")
    I("s_waitcnt vmcnt(0)")
    I("s_barrier")
    stamp(7)
    I(f"s_cmp_lg_u32 s{sWave}, 0")
    I("s_cbranch_scc1 K_nopub")
    I(f"s_lshl_b32 s{sT+2}, s2, 11")
    I(f"s_add_u32 s{sT+2}, s{sT+2}, {WS_TB}")
    I(f"buffer_store_dwordx4 {vr(pub,4)}, v{pub+8}, s[8:11], s{sT+2} offen sc1")
    I(f"buffer_store_dwordx4 {vr(pub+4,4)}, v{pub+8}, s[8:11], s{sT+2} offen offset:1024 sc1")
    L("K_nopub")
    I(f"s_mov_b32 s{sT+3}, 0")
    I(f"s_mov_b32 exec_lo, s{sValid}")
    I("s_mov_b32 exec_hi, 0")
    L("K_poll")
    I(f"buffer_load_dwordx2 {vr(pd,2)}, v{pa}, s[8:11], s{sT} offen sc1")
    I("s_waitcnt vmcnt(0)")
    I(f"v_cmp_ne_u32 vcc, s{sNonce}, v{pd+1}")
    I(f"v_and_b32 v{pd+1}, 0xf8000000, v{pd}")
    I(f"v_cmp_ne_u32_e64 {sr(sT+4,2)}, s{sTag}, v{pd+1}")
    I(f"s_or_b64 {sr(sT+4,2)}, vcc, {sr(sT+4,2)}")
    I("s_cbranch_scc0 K_polled")
    I("s_sleep 2")
    I(f"s_add_u32 s{sT+3}, s{sT+3}, 1")
    I(f"s_cmp_lt_u32 s{sT+3}, 40000")
    I("s_cbranch_scc1 K_poll")
    I("s_mov_b64 exec, -1")
    I("s_branch K_end")
    L("K_polled")
    I(f"v_and_b32 v{vEnt}, 0x7ffffff, v{pd}")
    I("s_mov_b64 exec, -1")
    stamp(8)
    cn = bT
    I(f"v_lshrrev_b32 v{cn}, 13, v{vEnt}")
    I("s_mov_b64 exec, 0xffff")
    I(f"ds_max_u32 v{vZero}, v{cn} offset:{L_MISC+4}")
    I("s_mov_b64 exec, -1")
    I(f"v_cmp_lt_u32 vcc, 64, v{cn}")
    I(f"s_mov_b32 s{sHasX}, 0")
    I("s_cmp_lg_u64 vcc, 0")
    I(f"s_cselect_b32 s{sHasX}, 1, 0")
    if FORCESLOW:
        I(f"s_mov_b32 s{sHasX}, 0")
        I("s_branch K_slow_next")

    L("K_round")
    vmc = VM()
    bp = bT + 1; sb = bT + 2; p2l = bT + 3; p2h = bT + 4; t0 = bT + 5; t1 = bT + 6
    ret = bT
    ta = bT + 8; td = bT + 10
    lo = bT + 14; pfd = bT + 15
    I(f"s_cmp_eq_u32 s{sHasX}, 0")
    I("s_cbranch_scc1 K_nox")
    I(f"v_lshrrev_b32 v{bp}, 3, v{vLane}")
    I(f"v_lshlrev_b32 v{t1}, 2, v{bp}")
    for X in range(2):
        I(f"ds_bpermute_b32 v{bE+X}, v{t1}, v{vEnt} offset:{32*X}")
    I(f"v_and_b32 v{p2l}, 7, v{vLane}")
    I(f"v_add_u32 v{p2l}, 32, v{p2l}")
    I(f"v_mul_u32_u24 v{sb}, 12, v{p2l}")
    I(f"v_lshl_add_u32 v{sb}, v{bp}, 16, v{sb}")
    I(f"v_lshlrev_b32 v{p2l}, 1, v{p2l}")
    I(f"v_add_u32 v{p2h}, 1, v{p2l}")
    I(f"s_lshl_b32 s{sT}, s{sWave}, 20")
    I("s_waitcnt lgkmcnt(0)")
    for X in range(2):
        m0 = sMask + 32 + 4 * X
        I(f"v_and_b32 v{t0}, 0x1fff, v{bE+X}")
        I(f"v_lshrrev_b32 v{t1}, 13, v{bE+X}")
        I(f"v_mad_u32_u24 v{bE+X}, v{t0}, 12, v{sb}")
        I(f"v_cmp_gt_i32_e64 {sr(m0,2)}, v{t1}, v{p2l}")
        I(f"v_cmp_gt_i32_e64 {sr(m0+2,2)}, v{t1}, v{p2h}")
        I(f"s_or_b64 exec, {sr(m0,2)}, 1")
        I(f"buffer_load_dwordx3 {vr(bX+4*X,3)}, v{bE+X}, s[4:7], s{sT} offen sc1")
        I("s_mov_b64 exec, -1")
        I(f"s_add_u32 s{sT}, s{sT}, {8*IMG_STRIDE}")
    L("K_nox")
    I(f"v_lshrrev_b32 v{bp}, 5, v{vLane}")
    I(f"v_lshlrev_b32 v{t1}, 2, v{bp}")
    for Lq in range(8):
        I(f"ds_bpermute_b32 v{bE+Lq}, v{t1}, v{vEnt} offset:{8*Lq}")
    I(f"v_and_b32 v{p2l}, 31, v{vLane}")
    I(f"v_add_u32 v{p2l}, s{sRound}, v{p2l}")
    I(f"v_mul_u32_u24 v{sb}, 12, v{p2l}")
    I(f"v_lshl_add_u32 v{sb}, v{bp}, 16, v{sb}")
    I(f"v_lshlrev_b32 v{p2l}, 1, v{p2l}")
    I(f"v_add_u32 v{p2h}, 1, v{p2l}")
    I(f"s_lshl_b32 s{sT}, s{sWave}, 20")
    for Lq in range(8):
        m0 = sMask + 4 * Lq
        I(f"s_waitcnt lgkmcnt({7-Lq})")
        I(f"v_and_b32 v{t0}, 0x1fff, v{bE+Lq}")
        I(f"v_lshrrev_b32 v{t1}, 13, v{bE+Lq}")
        I(f"v_mad_u32_u24 v{bE+Lq}, v{t0}, 12, v{sb}")
        I(f"v_cmp_gt_i32_e64 {sr(m0,2)}, v{t1}, v{p2l}")
        I(f"v_cmp_gt_i32_e64 {sr(m0+2,2)}, v{t1}, v{p2h}")
        I(f"s_or_b64 exec, {sr(m0,2)}, 1")
        I(f"buffer_load_dwordx3 {vr(bR+4*Lq,3)}, v{bE+Lq}, s[4:7], s{sT} offen sc1"); vmc.add(f"r{Lq}")
        I("s_mov_b64 exec, -1")
        if Lq < 7: I(f"s_add_u32 s{sT}, s{sT}, {2*IMG_STRIDE}")
    I(f"s_lshr_b32 s{sPf}, s2, 3")
    if PFA:
        I(f"s_mul_i32 s{sT}, s{sPf}, {646*128}")
        I(f"s_mul_i32 s{sT+1}, s{sWave}, {41*128}")
        I(f"s_add_u32 s{sT}, s{sT}, s{sT+1}")
        I(f"v_min_u32 v{t0}, 40, v{vLane}")
        I(f"v_lshlrev_b32 v{t0}, 7, v{t0}")
        I(f"buffer_load_dword v{pfd}, v{t0}, s[12:15], s{sT} offen"); vmc.add("pf")
    I(f"s_mul_i32 s{sPf}, s{sPf}, {323*128}")
    I(f"s_mul_i32 s{sT+1}, s{sWave}, {21*128}")
    I(f"s_add_u32 s{sPf}, s{sPf}, s{sT+1}")
    I(f"s_add_u32 s{sPf}, s{sPf}, {20000*128}")
    I(f"v_mov_b32 v{lo}, {L_REC}")
    stamp(9)
    I(f"s_cmp_eq_u32 s{sSlow}, 0")
    I("s_cbranch_scc1 K_pass2")
    I("s_waitcnt vmcnt(0)")
    I(f"v_mov_b32 v{td}, 1")
    for Lq in range(8):
        for x in range(2):
            I(f"s_mov_b64 exec, {sr(sMask+4*Lq+2*x,2)}")
            I(f"v_and_b32 v{ta+x}, 0x7fc, v{bR+4*Lq+x}")
            I(f"ds_add_u32 v{ta+x}, v{td} offset:{L_CUR}")
    I("s_mov_b64 exec, -1")
    I("s_waitcnt lgkmcnt(0)")
    I("s_barrier")
    I(f"s_cmp_lg_u32 s{sWave}, 0")
    I("s_cbranch_scc1 K_noscan")
    ca = 96; cb = 100; sa = 104; sx = 105; s0 = 106; ia = 108
    I(f"v_lshlrev_b32 v{sa}, 5, v{vLane}")
    I(f"v_cmp_gt_u32 vcc, 40, v{vLane}")
    for j in range(8): I(f"v_mov_b32 v{ca+j}, 0")
    I("s_mov_b64 exec, vcc")
    I(f"ds_read_b128 {vr(ca,4)}, v{sa} offset:{L_CUR}")
    I(f"ds_read_b128 {vr(cb,4)}, v{sa} offset:{L_CUR+16}")
    I("s_mov_b64 exec, -1")
    I("s_waitcnt lgkmcnt(0)")
    I(f"v_add_u32 v{sx}, v{ca}, v{ca+1}")
    for j in (2, 3, 4, 5, 6, 7): I(f"v_add_u32 v{sx}, v{sx}, v{ca+j}")
    I(f"v_mov_b32 v{s0}, v{sx}")
    wave_scan(s0)
    I(f"v_sub_u32 v{s0}, v{s0}, v{sx}")
    I(f"v_lshlrev_b32 v{s0}, 3, v{s0}")
    I(f"v_add_u32 v{s0}, {L_REC}, v{s0}")
    I("s_mov_b64 exec, vcc")
    for h, cc in enumerate((ca, cb)):
        I(f"v_mov_b32 v{ia}, v{s0}")
        I(f"v_add_u32 v{sx}, v{cc}, v{cc+1}")
        I(f"v_lshl_add_u32 v{ia+2}, v{sx}, 3, v{s0}")
        I(f"v_add_u32 v{ia+1}, -8, v{ia+2}")
        I(f"v_add_u32 v{sx}, v{cc+2}, v{cc+3}")
        I(f"v_lshl_add_u32 v{s0}, v{sx}, 3, v{ia+2}")
        I(f"v_add_u32 v{ia+3}, -8, v{s0}")
        I(f"ds_write_b128 v{sa}, {vr(ia,4)} offset:{L_CUR+16*h}")
        I(f"ds_write_b128 v{sa}, {vr(ia,4)} offset:{L_INIT+16*h}")
        I("s_nop 1")
    I("s_mov_b64 exec, -1")
    I("s_waitcnt lgkmcnt(0)")
    L("K_noscan")
    I("s_barrier")
    L("K_pass2")
    def atom(K, m, u, r):
        I(f"v_and_b32 v{ta+u}, 0x7fc, v{K}")
        I(f"v_bfe_i32 v{td+u}, v{K}, 2, 1")
        I(f"v_lshl_add_u32 v{td+u}, v{td+u}, 4, 8")
        I(f"s_mov_b64 exec, {sr(m,2)}")
        I(f"ds_add_rtn_u32 v{r}, v{ta+u}, v{td+u} offset:{L_CUR}")
        I("s_mov_b64 exec, -1")
    def put(K, A, x, m, r, sp):
        I(f"v_med3_i32 v{r}, v{r}, v{lo}, s{sHiB}")
        if x == 0: I(f"v_lshlrev_b32 v{sp}, 16, v{A}")
        else:      I(f"v_and_b32 v{A}, s{sHi}, v{A}")
        I(f"s_mov_b64 exec, {sr(m,2)}")
        I(f"ds_write2_b32 v{r}, v{K}, v{sp if x == 0 else A} offset0:0 offset1:1")
        I("s_mov_b64 exec, -1")
    def bin_pair(regs, masks, tags):
        for h in range(2):
            if tags: vmc.wait(tags[h])
            for x in range(2):
                atom(regs[h] + x, masks[h] + 2*x, x, ret + 2*h + x)
        I("s_waitcnt lgkmcnt(0)")
        for h in range(2):
            for x in range(2):
                put(regs[h] + x, regs[h] + 2, x, masks[h] + 2*x, ret + 2*h + x, regs[h] + 3)
    for Lq in range(0, 8, 2):
        bin_pair([bR + 4*Lq, bR + 4*Lq + 4], [sMask + 4*Lq, sMask + 4*Lq + 4], [f"r{Lq}", f"r{Lq+1}"])
    I(f"s_cmp_eq_u32 s{sHasX}, 0")
    I("s_cbranch_scc1 K_nox2")
    bin_pair([bX, bX + 4], [sMask + 32, sMask + 36], None)
    L("K_nox2")
    I("s_waitcnt lgkmcnt(0)")
    stamp(10)
    I("s_barrier")
    stamp(11)
    cu = 96; it = 100; ck = 104; ck2 = 108; a0 = 112; a1 = 113; a2 = 114; mx = 115
    I(f"s_mul_i32 s{sT}, s{sWave}, 80")
    I(f"v_lshlrev_b32 v{a1}, 4, v{vLane}")
    I(f"v_add_u32 v{a0}, s{sT}, v{a1}")
    I(f"ds_read_b128 {vr(cu,4)}, v{a0} offset:{L_CUR}")
    I(f"ds_read_b128 {vr(it,4)}, v{a0} offset:{L_INIT}")
    I(f"ds_read_b32 v{mx}, v{vZero} offset:{L_MISC+4}")
    I(f"ds_read_b128 {vr(ck,4)}, v{a1} offset:{L_CUR}")
    I(f"v_and_b32 v{a2}, 0xf0, v{a1}")
    I(f"ds_read_b128 {vr(ck2,4)}, v{a2} offset:{L_CUR+1024}")
    I("s_waitcnt lgkmcnt(0)")
    I(f"v_readfirstlane_b32 s{sMaxCnt}, v{mx}")
    I(f"s_cmp_lg_u32 s{sSlow}, 0")
    I("s_cbranch_scc1 K_params")
    I(f"v_add_u32 v{ck+1}, 8, v{ck+1}")
    I(f"v_add_u32 v{ck+3}, 8, v{ck+3}")
    I(f"v_add_u32 v{ck2+1}, 8, v{ck2+1}")
    I(f"v_add_u32 v{ck2+3}, 8, v{ck2+3}")
    I(f"v_cmp_gt_i32 vcc, v{ck}, v{ck+1}")
    I(f"v_cmp_gt_i32_e64 {sr(sT+2,2)}, v{ck+2}, v{ck+3}")
    I(f"v_cmp_gt_i32_e64 {sr(sT+4,2)}, v{ck2}, v{ck2+1}")
    I(f"v_cmp_gt_i32_e64 {sr(sT+6,2)}, v{ck2+2}, v{ck2+3}")
    I(f"s_or_b64 vcc, vcc, {sr(sT+2,2)}")
    I(f"s_or_b64 vcc, vcc, {sr(sT+4,2)}")
    I(f"s_or_b64 vcc, vcc, {sr(sT+6,2)}")
    I(f"s_cmp_gt_u32 s{sMaxCnt}, 80")
    I(f"s_cselect_b32 s{sT+2}, 1, 0")
    I("s_cmp_lg_u64 vcc, 0")
    I(f"s_cselect_b32 s{sT+3}, 1, 0")
    I(f"s_or_b32 s{sT+2}, s{sT+2}, s{sT+3}")
    I(f"s_cmp_eq_u32 s{sT+2}, 0")
    I("s_cbranch_scc1 K_params")
    I(f"s_mov_b32 s{sSlow}, 1")
    I(f"s_mov_b32 s{sHasX}, 0")
    I(f"s_mov_b32 s{sRound}, 0")
    I("s_waitcnt vmcnt(0)")
    I("s_barrier")
    L("K_slow_next")
    I(f"v_min_u32 v{a0}, 319, v0")
    I(f"v_lshlrev_b32 v{a0}, 2, v{a0}")
    I(f"ds_write_b32 v{a0}, v{vZero} offset:{L_CUR}")
    I("s_waitcnt lgkmcnt(0)")
    I("s_barrier")
    I("s_branch K_round")
    L("K_params")
    d1 = ck; d3 = ck + 1; nn = ck + 2; stp = ck + 3; tt = ck2
    I(f"v_sub_u32 v{d1}, v{cu+1}, v{cu}")
    I(f"v_sub_u32 v{d3}, v{cu+3}, v{cu+2}")
    I(f"v_add_u32 v{nn}, 8, v{it+3}")
    I(f"v_sub_u32 v{stp}, v{cu}, v{it}")
    I(f"v_sub_u32 v{tt}, v{it+1}, v{cu+1}")
    I(f"v_add_u32 v{d1}, 8, v{d1}")
    I(f"v_add_u32 v{d3}, 8, v{d3}")
    I(f"v_add_u32 v{stp}, v{stp}, v{tt}")
    I(f"v_sub_u32 v{tt}, v{cu+2}, v{it+2}")
    I(f"v_add_u32 v{stp}, v{stp}, v{tt}")
    I(f"v_sub_u32 v{tt}, v{it+3}, v{cu+3}")
    I(f"v_add_u32 v{stp}, v{stp}, v{tt}")
    I(f"v_add_u32 v{stp}, 255, v{stp}")
    I(f"v_lshrrev_b32 v{stp}, 8, v{stp}")
    I(f"v_min_u32 v{stp}, 640, v{stp}")
    I(f"v_mov_b32 v{vRO}, v{vRecOff}")
    for p in range(5):
        I(f"v_readlane_b32 s{sA0+p}, v{it}, {p}")
        I(f"v_readlane_b32 s{sT1+p}, v{cu}, {p}")
        I(f"v_readlane_b32 s{sD1+p}, v{d1}, {p}")
        I(f"v_readlane_b32 s{sT3+p}, v{cu+2}, {p}")
        I(f"v_readlane_b32 s{sD3+p}, v{d3}, {p}")
        I(f"v_readlane_b32 s{sN+p}, v{nn}, {p}")
        I(f"v_readlane_b32 s{sSt+p}, v{stp}, {p}")
    I(f"s_max_u32 s{sS}, s{sSt}, 4")
    for p in range(1, 5):
        I(f"s_max_u32 s{sS}, s{sS}, s{sSt+p}")
    I(f"s_sub_u32 s{sS}, s{sS}, 1")
    I(f"s_mov_b32 s{sJ}, 0")
    pre = [vD1, vD1 + 2, vD2, vD2 + 2, vAp]
    for p in range(5):
        chain(p, pre[p], vX + (p & 1))
    I(f"v_add_u32 v{vRO}, 256, v{vRO}")
    chain(0, vRec, vX)
    for p in range(5):
        I(f"s_waitcnt lgkmcnt({5-p})")
        issue_tile(p, pre[p], vX + 2, vX + 3)
        I("s_nop 0")
        I(f"v_cvt_pk_bf16_f32 v{vCV+p}, v{vX+3}, v{vX+3}")
    stamp(12)

    def coef_io(p):
        I(f"ds_write_b16 v{vCA+p}, v{vCV+p}")
        I(f"ds_read_b128 {vr(vBt,4)}, v{vCoefR}")
        I(f"ds_write_b16 v{vCA+p}, v{vZero}")

    def mfma1(p):
        I(f"v_mfma_f32_16x16x32_bf16 {vr(vD1,4)}, {vr(vG+4*p,4)}, {vr(vWd1,4)}, 0")
        I(f"v_mfma_f32_16x16x32_bf16 {vr(vD2,4)}, {vr(vG+4*p,4)}, {vr(vWd2,4)}, 0")

    def pack():
        I(f"v_cvt_pk_bf16_f32 v{vAp}, v{vD1}, v{vD1+1}")
        I(f"v_cvt_pk_bf16_f32 v{vAp+1}, v{vD1+2}, v{vD1+3}")
        I(f"v_cvt_pk_bf16_f32 v{vAp+2}, v{vD2}, v{vD2+1}")
        I(f"v_cvt_pk_bf16_f32 v{vAp+3}, v{vD2+2}, v{vD2+3}")

    def mfma2(p):
        I(f"v_mfma_f32_16x16x32_bf16 {vr(vAcc+4*p,4)}, {vr(vAp,4)}, {vr(vBt,4)}, {vr(vAcc+4*p,4)}")

    L("K_step")
    for p in range(5):
        q = (p + 1) % 5
        L(f"K_blk_{p}")
        I(f"s_cmp_lt_u32 s{sJ}, s{sSt+p}")
        I(f"s_cbranch_scc0 K_skip_{p}")
        coef_io(p)
        I("s_waitcnt vmcnt(4) lgkmcnt(3)")
        mfma1(p)
        issue_tile(p, vRec, vX + 2, vX + 3)
        if p == 4: I(f"v_add_u32 v{vRO}, 256, v{vRO}")
        chain(q, vRec, vX)
        pack()
        I(f"v_cvt_pk_bf16_f32 v{vCV+p}, v{vX+3}, v{vX+3}")
        I("s_waitcnt lgkmcnt(2)")
        mfma2(p)
    L("K_stepend")
    I(f"s_add_u32 s{sJ}, s{sJ}, 1")
    I(f"s_cmp_gt_u32 s{sJ}, 3")
    I("s_cbranch_scc1 K_nobar")
    if PFB:
        I(f"s_cmp_gt_u32 s{sJ}, 2")
        I("s_cbranch_scc1 K_nopf")
        I(f"v_min_u32 v{vX+4}, 20, v{vLane}")
        I(f"v_lshlrev_b32 v{vX+4}, 7, v{vX+4}")
        I(f"buffer_load_dword v{vX+5}, v{vX+4}, s[12:15], s{sPf} offen")
        I(f"s_add_u32 s{sPf}, s{sPf}, {10000*128}")
        L("K_nopf")
    if STEPBAR: I("s_barrier")
    L("K_nobar")
    I(f"s_cmp_lt_u32 s{sJ}, s{sS}")
    I("s_cbranch_scc1 K_step")
    for p in range(5):
        I(f"s_cmp_lt_u32 s{sJ}, s{sSt+p}")
        I(f"s_cbranch_scc0 K_last_{p}")
        coef_io(p)
        I(f"s_waitcnt vmcnt({4-p})")
        mfma1(p)
        I("s_nop 7")
        pack()
        I("s_nop 0")
        I("s_waitcnt lgkmcnt(1)")
        mfma2(p)
        L(f"K_last_{p}")
    stamp(13)
    I("s_waitcnt vmcnt(0) lgkmcnt(0)")
    I(f"s_cmp_eq_u32 s{sSlow}, 0")
    I("s_cbranch_scc1 K_fin")
    I(f"s_add_u32 s{sRound}, s{sRound}, 32")
    I(f"s_lshl_b32 s{sT}, s{sRound}, 1")
    I(f"s_cmp_ge_u32 s{sT}, s{sMaxCnt}")
    I("s_cbranch_scc1 K_fin")
    I("s_barrier")
    I("s_branch K_slow_next")
    L("K_fin")
    I("s_nop 7")
    for i in range(5):
        epilogue(i)
    I("s_cmp_lg_u32 s2, 0")
    I("s_cbranch_scc1 K_nog")
    I(f"s_cmp_lg_u32 s{sWave}, 0")
    I("s_cbranch_scc1 K_nog")
    I(f"v_mov_b32 v{vX}, s{sNonce}")
    I("s_mov_b64 exec, 1")
    I(f"buffer_store_dword v{vX}, v{vZero}, s[8:11], 0 offen offset:{WS_G}")
    I("s_mov_b64 exec, -1")
    L("K_nog")
    stamp(14)
    stamp_flush(128 << 20, vX)
    I("s_branch K_end")
    for p in range(5):
        q = (p + 1) % 5
        L(f"K_skip_{p}")
        I("s_mov_b64 exec, 1")
        I(f"buffer_load_dwordx4 {vr(vG+4*p,4)}, v{vZero}, s[12:15], s{sOOB} offen")
        I("s_mov_b64 exec, -1")
        if p == 4: I(f"v_add_u32 v{vRO}, 256, v{vRO}")
        chain(q, vRec, vX)
        I(f"s_branch {'K_stepend' if p == 4 else f'K_blk_{p+1}'}")
    L("K_end")
    I("s_endpgm")


def main():
    K = NAME + "_kernel"
    header(K, NB, 1024, L_END)
    gen(K)
    out.append('.section .rodata,"a"')
    out.append(".p2align 6")
    kdesc(K, 128)
    open(OUTF, "w").write("\n".join(out) + "\n")


main()
```

```python
import os
import sys

NAME = "standalone__molecular_angular_gemnet__graph"
E = 160000
T = 2560000
NB = 250
CH = 10240
EB = 640

WS_G = 0
WS_TB = 4096
WS_TBEND = WS_TB + NB * 2048
WS_IMG = 1 << 20
IMG_STRIDE = 65536

L_CUR = 0
L_INIT = 1280
L_MISC = 2560
L_SENT = L_MISC + 32
L_COEF = 2688
L_REC = L_COEF + 16384
GSZ = 1792
L_END = L_REC + 80 * GSZ
P_CNT = L_REC
P_ST = L_REC + 1024
P_ENT = L_REC + 2048
P_IMG = L_REC + 3072

DBG = int(os.environ.get("DBG", "0"))
OUTF = os.environ.get("OUTF", f"cdna_kernels/{NAME}.s")
PFA = int(os.environ.get("PFA", "1"))
PFB = int(os.environ.get("PFB", "1"))
STEPBAR = int(os.environ.get("STEPBAR", "1"))
FORCESLOW = int(os.environ.get("FORCESLOW", "0"))
out = []


def I(s): out.append("    " + s)
def L(s): out.append(s + ":")
def C(s): out.append("    ; " + s)
def vr(a, n): return "v[%d:%d]" % (a, a + n - 1)
def sr(a, n): return "s[%d:%d]" % (a, a + n - 1)


def srd(d, lo, hi, nbytes):
    I(f"s_mov_b32 s{d}, {lo}")
    I(f"s_mov_b32 s{d+1}, {hi}")
    I(f"s_mov_b32 s{d+2}, {nbytes}")
    I(f"s_mov_b32 s{d+3}, 0x20000")


STAMPV = 13
def stamp(idx):
    if DBG != 3: return
    I("s_memrealtime s[100:101]")
    I("s_waitcnt lgkmcnt(0)")
    I(f"v_writelane_b32 v{STAMPV}, s100, {idx}")


def stamp_dyn(sreg, base):
    if DBG != 3: return
    I("s_memrealtime s[100:101]")
    I(f"s_min_u32 s99, s{sreg}, 12")
    I(f"s_add_u32 m0, s99, {base}")
    I("s_waitcnt lgkmcnt(0)")
    I(f"v_writelane_b32 v{STAMPV}, s100, m0")


def stamp_flush(region, lanev):
    if DBG != 3: return
    I("s_load_dwordx2 s[90:91], s[0:1], 104")
    I("s_waitcnt lgkmcnt(0)")
    srd(20, "s90", "s91", 268435456)
    I("s_lshl_b32 s99, s2, 4")
    I(f"s_add_u32 s99, s99, s{sWave}")
    I("s_lshl_b32 s99, s99, 8")
    I(f"s_add_u32 s99, s99, {region}")
    I(f"v_lshlrev_b32 v{lanev}, 2, v{vLane}")
    I(f"buffer_store_dword v{STAMPV}, v{lanev}, s[20:23], s99 offen")
    I("s_waitcnt vmcnt(0)")


def wave_scan(x):
    for sh in (1, 2, 4, 8):
        I("s_nop 1")
        I(f"v_add_u32_dpp v{x}, v{x}, v{x} row_shr:{sh} row_mask:0xf bank_mask:0xf bound_ctrl:0")
    I("s_nop 1")
    I(f"v_add_u32_dpp v{x}, v{x}, v{x} row_bcast:15 row_mask:0xa bank_mask:0xf")
    I("s_nop 1")
    I(f"v_add_u32_dpp v{x}, v{x}, v{x} row_bcast:31 row_mask:0xc bank_mask:0xf")


class VM:
    def __init__(self): self.q = []
    def add(self, tag): self.q.append(tag)
    def wait(self, tag, extra=""):
        idx = max(i for i, t in enumerate(self.q) if t == tag)
        n = len(self.q) - 1 - idx
        assert n < 64
        I(f"s_waitcnt vmcnt({n}){extra}")


def header(name, g, b, lds):
    out.append(open("header.txt").read().rstrip("\n"))
    out.append(f"; @launch grid=({g},1,1) block=({b},1,1) lds={lds}")
    out.append('.amdgcn_target "amdgcn-amd-amdhsa--gfx950"')
    out.append(".text")


def kstart(name):
    out.append(f".globl {name}")
    out.append(".p2align 8")
    out.append(f".type {name},@function")
    L(name)


def kdesc(name, vgpr, sgpr=102):
    out.append(f".amdhsa_kernel {name}")
    out.append(f"  .amdhsa_next_free_vgpr {vgpr}")
    out.append(f"  .amdhsa_next_free_sgpr {sgpr}")
    out.append(f"  .amdhsa_accum_offset {(vgpr + 3) // 4 * 4}")
    out.append("  .amdhsa_group_segment_fixed_size 0")
    out.append("  .amdhsa_kernarg_size 112")
    out.append("  .amdhsa_user_sgpr_count 2")
    out.append("  .amdhsa_user_sgpr_kernarg_segment_ptr 1")
    out.append("  .amdhsa_system_sgpr_workgroup_id_x 1")
    out.append(".end_amdhsa_kernel")


vLane = 1; vH16 = 2; vRecOff = 3; vCoefW = 4; vCoefR = 5; vFreq = 6; vZero = 7
vCen0 = 8; vCen1 = 9; vSh = 10; vOutOff = 11; vEnt = 12
vWsbf = 14; vWup = 16; vWrb = 18
vWd1 = 20; vWd2 = 24
vAcc = 28
vDist = 48
vRO = 53
vMrow = 54
pO = 64; pIN = 74; pAN = 84; pB4 = 90; pRK = 100
pA16 = 110; pA8 = 111; pA4 = 112; pT = 113
pHi = vAcc
pE4 = vAcc + 8
pS = vAcc + 12
bR = 64
bX = 96
bE = 104
bT = 112
vG = 64
vCA = 84; vCV = 89
vBt = 96; vD1 = 100; vD2 = 104; vAp = 108
vRec = 112
vX = 114

sWave = 3
sB = 24; sNonce = 25; sTag = 26; sSlow = 27; sRound = 28; sMaxCnt = 29; sJ = 30; sS = 31
sOutB = 32; sME0 = 33; sHi = 34; sHiB = 35; sHasX = 36; sOOB = 37; sPf = 38; sValid = 39
sMask = 40
sGA = 40
sA0 = 40; sT1 = 45; sD1 = 50; sT3 = 55; sD3 = 60; sN = 65; sSt = 70
sT = 80


def chain(p, dst, a):
    I(f"v_add_u32 v{a}, s{sA0+p}, v{vRO}")
    I(f"v_cmpx_le_u32 vcc, s{sT1+p}, v{a}")
    I(f"v_add_u32 v{a}, s{sD1+p}, v{a}")
    I(f"v_cmpx_le_u32 vcc, s{sT3+p}, v{a}")
    I(f"v_add_u32 v{a}, s{sD3+p}, v{a}")
    I(f"v_cmpx_le_u32 vcc, s{sN+p}, v{a}")
    I(f"v_mov_b32 v{a}, {L_SENT}")
    I("s_mov_b64 exec, -1")
    I(f"ds_read_b64 {vr(dst,2)}, v{a}")


def issue_tile(p, rec, t, a):
    I(f"v_lshrrev_b32 v{t}, 9, v{rec}")
    I(f"v_and_or_b32 v{t}, v{t}, s{sME0}, v{vH16}")
    I(f"buffer_load_dwordx4 {vr(vG+4*p,4)}, v{t}, s[12:15], 0 offen")
    I(f"v_mul_f32 v{a}, v{rec+1}, v{vFreq}")
    I(f"v_bfe_u32 v{vCA+p}, v{rec}, 11, 3")
    I(f"v_fract_f32 v{a}, v{a}")
    I(f"v_lshl_add_u32 v{vCA+p}, v{vCA+p}, 7, v{vCoefW}")
    I(f"v_cos_f32 v{a}, v{a}")


def epilogue(i):
    acc = vAcc + 4 * i
    d0 = vX + 2; d1 = vX + 3; p = vX + 4; R = vX + 6; G = vD1; RB = vD2; U = vBt; A = vAp; M = vX + 8
    I(f"v_sub_f32 v{d0}, v{vDist+i}, v{vCen0}")
    I(f"v_sub_f32 v{d1}, v{vDist+i}, v{vCen1}")
    def rnd():
        I(f"v_cvt_pk_bf16_f32 v{p}, v{d0}, v{d1}")
        I(f"v_lshlrev_b32 v{d0}, 16, v{p}")
        I(f"v_and_b32 v{d1}, s{sHi}, v{p}")
    rnd()
    I(f"v_mul_f32 v{d0}, v{d0}, v{d0}")
    I(f"v_mul_f32 v{d1}, v{d1}, v{d1}")
    rnd()
    I(f"v_mul_f32 v{d0}, 0xc1200000, v{d0}")
    I(f"v_mul_f32 v{d1}, 0xc1200000, v{d1}")
    rnd()
    I(f"v_mul_f32 v{d0}, 0x3fb8aa3b, v{d0}")
    I(f"v_mul_f32 v{d1}, 0x3fb8aa3b, v{d1}")
    I(f"v_exp_f32 v{d0}, v{d0}")
    I(f"v_exp_f32 v{d1}, v{d1}")
    I("s_nop 0")
    I(f"v_cvt_pk_bf16_f32 v{p}, v{d0}, v{d1}")
    I(f"v_and_b32 v{R}, 0xffff, v{p}")
    I(f"v_lshrrev_b32 v{R+1}, 16, v{p}")
    I(f"v_lshlrev_b32 v{R}, v{vSh}, v{R}")
    I(f"v_lshlrev_b32 v{R+1}, v{vSh}, v{R+1}")
    I("s_nop 1")
    I(f"v_mfma_f32_16x16x16_bf16 {vr(G,4)}, {vr(vWsbf,2)}, {vr(R,2)}, 0")
    I(f"v_mfma_f32_16x16x16_bf16 {vr(RB,4)}, {vr(vWrb,2)}, {vr(R,2)}, 0")
    I(f"v_lshlrev_b32 v{M}, 16, v{vMrow+2*i}")
    I(f"v_and_b32 v{M+1}, s{sHi}, v{vMrow+2*i}")
    I(f"v_lshlrev_b32 v{M+2}, 16, v{vMrow+2*i+1}")
    I(f"v_and_b32 v{M+3}, s{sHi}, v{vMrow+2*i+1}")
    I("s_nop 4")
    for j in range(4):
        I(f"v_mul_f32 v{G+j}, v{G+j}, v{acc+j}")
    I("s_nop 0")
    for j in range(4):
        I(f"v_add_f32_dpp v{A+j}, v{G+j}, v{G+j} quad_perm:[1,0,3,2] row_mask:0xf bank_mask:0xf")
    I(f"v_cvt_pk_bf16_f32 v{R}, v{A}, v{A+1}")
    I(f"v_cvt_pk_bf16_f32 v{R+1}, v{A+2}, v{A+3}")
    I("s_nop 1")
    I(f"v_mfma_f32_16x16x16_bf16 {vr(U,4)}, {vr(vWup,2)}, {vr(R,2)}, 0")
    I("s_nop 7")
    for j in range(4):
        I(f"v_fma_f32 v{M+j}, v{U+j}, v{RB+j}, v{M+j}")
    I(f"v_cvt_pk_bf16_f32 v{R}, v{M}, v{M+1}")
    I(f"v_cvt_pk_bf16_f32 v{R+1}, v{M+2}, v{M+3}")
    I("s_mov_b32 exec_lo, 0x55555555")
    I("s_mov_b32 exec_hi, 0x55555555")
    I(f"buffer_store_dwordx2 {vr(R,2)}, v{vOutOff}, s[16:19], s{sOutB} offen offset:{i*256}")
    I("s_mov_b64 exec, -1")


def gen(name):
    vm = VM()
    kstart(name)
    I(f"s_cmp_ge_u32 s2, {NB}")
    I("s_cbranch_scc1 K_end")
    if DBG == 3: I(f"v_mov_b32 v{STAMPV}, 0")
    stamp(0)
    I("s_load_dwordx8 s[40:47], s[0:1], 0")
    I("s_load_dwordx16 s[48:63], s[0:1], 32")
    I("s_load_dwordx2 s[64:65], s[0:1], 104")
    I(f"v_lshlrev_b32 v{pA16}, 4, v0")
    I(f"v_lshlrev_b32 v{pA8}, 3, v0")
    I(f"v_lshlrev_b32 v{pA4}, 2, v0")
    I(f"v_and_b32 v{vLane}, 63, v0")
    I(f"v_lshrrev_b32 v{pT}, 6, v0")
    I(f"v_mov_b32 v{vZero}, 0")
    I(f"v_readfirstlane_b32 s{sWave}, v{pT}")
    I(f"v_and_b32 v{pT+1}, 0x3fc, v{pA4}")
    I(f"ds_write_b32 v{pT+1}, v{vZero} offset:{P_CNT}")
    I(f"s_mul_i32 s{sT}, s2, {CH*4}")
    I(f"s_mul_i32 s{sT+3}, s2, {CH*2}")
    I(f"s_add_u32 s{sT+1}, s{sT}, 16384")
    I(f"s_add_u32 s{sT+2}, s{sT}, 32768")
    I(f"s_add_u32 s{sT+4}, s{sT+3}, 8192")
    I(f"s_add_u32 s{sT+5}, s{sT+3}, 16384")
    I("s_waitcnt lgkmcnt(0)")
    srd(20, "s44", "s45", T * 4)
    I(f"buffer_load_dwordx4 {vr(pO,4)}, v{pA16}, s[20:23], s{sT} offen nt"); vm.add("o0")
    I(f"buffer_load_dwordx4 {vr(pO+4,4)}, v{pA16}, s[20:23], s{sT+1} offen nt"); vm.add("o1")
    I(f"buffer_load_dwordx2 {vr(pO+8,2)}, v{pA8}, s[20:23], s{sT+2} offen nt"); vm.add("o2")
    I(f"s_load_dword s{sNonce}, s[64:65], {WS_G}")
    I(f"s_add_u32 s4, s64, {WS_IMG}")
    I("s_addc_u32 s5, s65, 0")
    I(f"s_mov_b32 s6, {NB*IMG_STRIDE}")
    I("s_mov_b32 s7, 0x20000")
    srd(8, "s64", "s65", WS_TBEND)
    srd(12, "s40", "s41", E * 32)
    srd(16, "s62", "s63", E * 32)
    I(f"s_and_b32 s{sT+6}, s2, 7")
    I(f"s_lshr_b32 s{sT+7}, s2, 3")
    I(f"s_mul_i32 s{sB}, s{sT+6}, 31")
    I(f"s_add_u32 s{sB}, s{sB}, s{sT+7}")
    I(f"s_min_u32 s{sT+6}, s{sT+6}, 2")
    I(f"s_add_u32 s{sB}, s{sB}, s{sT+6}")
    g = pT + 1; i16 = pT + 2; t = pT + 3; u = pT + 4; w5 = pT + 5; w6 = pT + 6; w7 = pT + 7
    I(f"v_lshrrev_b32 v{g}, 4, v{vLane}")
    I(f"v_and_b32 v{i16}, 15, v{vLane}")
    I(f"v_and_b32 v{t}, 1, v{g}")
    I(f"v_lshlrev_b32 v{vH16}, 4, v{t}")
    I(f"v_lshrrev_b32 v{u}, 1, v{g}")
    I(f"v_lshl_add_u32 v{u}, v{u}, 4, v{i16}")
    I(f"v_lshlrev_b32 v{vRecOff}, 3, v{u}")
    I(f"v_lshrrev_b32 v{u}, 2, v{i16}")
    I(f"v_lshlrev_b32 v{u}, 4, v{u}")
    I(f"v_and_b32 v{vCoefW}, 3, v{i16}")
    I(f"v_lshl_add_u32 v{u}, v{vCoefW}, 1, v{u}")
    I(f"v_lshrrev_b32 v{vCoefW}, 1, v{g}")
    I(f"v_lshl_add_u32 v{u}, v{vCoefW}, 3, v{u}")
    I(f"v_lshl_add_u32 v{u}, v{t}, 6, v{u}")
    I(f"s_lshl_b32 s{sT+6}, s{sWave}, 10")
    I(f"s_add_u32 s{sT+6}, s{sT+6}, {L_COEF}")
    I(f"v_add_u32 v{vCoefW}, s{sT+6}, v{u}")
    I(f"v_lshlrev_b32 v{u}, 6, v{i16}")
    I(f"v_lshl_add_u32 v{u}, v{g}, 4, v{u}")
    I(f"v_add_u32 v{vCoefR}, s{sT+6}, v{u}")
    I(f"v_and_b32 v{u}, 1, v{vLane}")
    I(f"v_lshlrev_b32 v{vSh}, 4, v{u}")
    I(f"v_lshrrev_b32 v{u}, 1, v{i16}")
    I(f"v_lshlrev_b32 v{u}, 5, v{u}")
    I(f"v_lshl_add_u32 v{vOutOff}, v{g}, 3, v{u}")
    z = pT + 8
    z = pT + 9
    for j in range(4):
        I(f"v_mov_b32 v{z+j}, 0")
    I(f"v_lshlrev_b32 v{u}, 4, v{vLane}")
    I(f"v_add_u32 v{u}, s{sT+6}, v{u}")
    I(f"ds_write_b128 v{u}, {vr(z,4)}")
    I(f"v_mov_b32 v{z}, 0xffffc000")
    I(f"ds_write_b32 v{vZero}, v{vZero} offset:{L_MISC}")
    I(f"ds_write_b32 v{vZero}, v{vZero} offset:{L_MISC+4}")
    I(f"ds_write_b64 v{vZero}, {vr(z,2)} offset:{L_SENT}")
    I(f"v_mul_u32_u24 v{z}, {GSZ}, v0")
    I(f"v_add_u32 v{z}, {L_REC}, v{z}")
    I(f"v_add_u32 v{z+1}, {GSZ//2-8}, v{z}")
    I(f"v_add_u32 v{z+2}, {GSZ//2}, v{z}")
    I(f"v_add_u32 v{z+3}, {GSZ-8}, v{z}")
    I("v_cmp_gt_u32 vcc, 80, v0")
    I(f"s_and_saveexec_b64 {sr(sT+8,2)}, vcc")
    I(f"ds_write_b128 v{pA16}, {vr(z,4)} offset:{L_CUR}")
    I(f"ds_write_b128 v{pA16}, {vr(z,4)} offset:{L_INIT}")
    I("s_mov_b64 exec, -1")
    I(f"v_lshlrev_b32 v{u}, 1, v{i16}")
    I(f"v_lshl_add_u32 v{w5}, v{t}, 8, v{u}")
    I(f"v_lshl_add_u32 v{w6}, v{g}, 7, v{u}")
    I(f"v_lshl_add_u32 v{w7}, v{g}, 6, v{u}")
    I("s_waitcnt lgkmcnt(0)")
    stamp(1)
    I("s_barrier")
    srd(20, "s42", "s43", T * 4)
    I(f"buffer_load_dwordx4 {vr(pIN,4)}, v{pA16}, s[20:23], s{sT} offen nt"); vm.add("i0")
    I(f"buffer_load_dwordx4 {vr(pIN+4,4)}, v{pA16}, s[20:23], s{sT+1} offen nt"); vm.add("i1")
    I(f"buffer_load_dwordx2 {vr(pIN+8,2)}, v{pA8}, s[20:23], s{sT+2} offen nt"); vm.add("i2")
    srd(20, "s48", "s49", T * 2)
    I(f"buffer_load_dwordx2 {vr(pAN,2)}, v{pA8}, s[20:23], s{sT+3} offen nt"); vm.add("a0")
    I(f"buffer_load_dwordx2 {vr(pAN+2,2)}, v{pA8}, s[20:23], s{sT+4} offen nt"); vm.add("a1")
    I(f"buffer_load_dword v{pAN+4}, v{pA4}, s[20:23], s{sT+5} offen nt"); vm.add("a2")
    srd(20, "s58", "s59", 512)
    for j in range(8):
        d = pHi + (j >> 1) if j & 1 else vWd1 + (j >> 1)
        I(f"buffer_load_ushort v{d}, v{w5}, s[20:23], 0 offen offset:{j*32}"); vm.add("w")
    srd(20, "s56", "s57", 512)
    for j in range(4):
        d = pHi + 4 + (j >> 1) if j & 1 else vWsbf + (j >> 1)
        I(f"buffer_load_ushort v{d}, v{w6}, s[20:23], 0 offen offset:{j*32}"); vm.add("w")
    srd(20, "s60", "s61", 512)
    for j in range(4):
        d = pHi + 6 + (j >> 1) if j & 1 else vWup + (j >> 1)
        I(f"buffer_load_ushort v{d}, v{w6}, s[20:23], 0 offen offset:{j*32}"); vm.add("w")
    srd(20, "s54", "s55", 256)
    for j in range(2):
        I(f"buffer_load_ushort v{vWrb + j}, v{w7}, s[20:23], 0 offen offset:{j*32}"); vm.add("w")
    srd(20, "s50", "s51", 16)
    I(f"v_lshlrev_b32 v{u}, 2, v{g}")
    I(f"buffer_load_dword v{vCen0}, v{u}, s[20:23], 0 offen"); vm.add("w")
    srd(20, "s52", "s53", 4)
    I(f"v_lshlrev_b32 v{u}, 1, v{t}")
    I(f"buffer_load_ushort v{vFreq}, v{u}, s[20:23], 0 offen"); vm.add("w")
    srd(20, "s46", "s47", E * 2)
    I(f"s_mul_i32 s{sT+6}, s{sB}, {EB*2}")
    I(f"s_mul_i32 s{sT+7}, s{sWave}, 80")
    I(f"s_add_u32 s{sT+6}, s{sT+6}, s{sT+7}")
    I(f"v_lshrrev_b32 v{u}, 1, v{i16}")
    I(f"v_lshlrev_b32 v{u}, 1, v{u}")
    for p in range(5):
        I(f"buffer_load_ushort v{vDist+p}, v{u}, s[20:23], s{sT+6} offen offset:{p*16}"); vm.add("w")
    I(f"s_mul_i32 s{sOutB}, s{sB}, {EB*32}")
    I(f"s_mul_i32 s{sT+7}, s{sWave}, 1280")
    I(f"s_add_u32 s{sOutB}, s{sOutB}, s{sT+7}")
    for p in range(5):
        I(f"buffer_load_dwordx2 {vr(vMrow+2*p,2)}, v{vOutOff}, s[12:15], s{sOutB} offen offset:{p*256}"); vm.add("w")
    I(f"s_add_u32 s{sNonce}, s{sNonce}, 0x9e3779b9")
    I(f"s_mul_i32 s{sTag}, s{sNonce}, 0x85ebca6b")
    I(f"s_and_b32 s{sTag}, s{sTag}, 0xf8000000")
    I(f"s_mov_b32 s{sME0}, 0xffffffe0")
    I(f"s_mov_b32 s{sHi}, 0xffff0000")
    I(f"s_mov_b32 s{sHiB}, {L_END-8}")
    I(f"s_mov_b32 s{sOOB}, {E*32}")
    I(f"s_mov_b32 s{sSlow}, {FORCESLOW}")
    I(f"s_mov_b32 s{sRound}, 0")
    I(f"s_movk_i32 s{sT+8}, 0xff60")
    one = pT + 14
    I(f"v_mov_b32 v{one}, 1")
    B4 = list(range(pB4, pB4 + 10)); RK = list(range(pRK, pRK + 10))
    O = list(range(pO, pO + 10)); IN = list(range(pIN, pIN + 10))
    for tag, ks in (("o0", [0, 1, 2, 3]), ("o1", [4, 5, 6, 7]), ("o2", [8, 9])):
        vm.wait(tag)
        for k in ks: I(f"v_lshrrev_b32 v{B4[k]}, 7, v{O[k]}")
        for k in ks: I(f"v_mul_u32_u24 v{B4[k]}, 0xcccd, v{B4[k]}")
        for k in ks: I(f"v_lshrrev_b32 v{B4[k]}, 16, v{B4[k]}")
        for k in ks: I(f"v_and_b32 v{B4[k]}, -4, v{B4[k]}")
        for k in ks: I(f"ds_add_rtn_u32 v{RK[k]}, v{B4[k]}, v{one} offset:{P_CNT}")
        for k in ks: I(f"v_mad_i32_i24 v{O[k]}, v{B4[k]}, s{sT+8}, v{O[k]}")
        for k in ks: I(f"v_mul_u32_u24 v{O[k]}, 0x802, v{O[k]}")
        for k in ks: I(f"v_and_b32 v{O[k]}, 0x3ff0, v{O[k]}")
    I("s_waitcnt lgkmcnt(0)")
    stamp(2)
    I("s_barrier")
    stamp(3)
    c = pT + 1
    a16 = pT; pp = pS; x = pS + 4; tot = pS + 5; p2 = pS + 6; p3 = pS + 7
    st = pT + 5
    ad = pT + 9
    I(f"v_lshlrev_b32 v{a16}, 4, v{vLane}")
    I(f"ds_read_b128 {vr(c,4)}, v{a16} offset:{P_CNT}")
    I("s_waitcnt lgkmcnt(0)")
    for j in range(4): I(f"v_add_u32 v{pp+j}, 1, v{c+j}")
    for j in range(4): I(f"v_lshrrev_b32 v{pp+j}, 1, v{pp+j}")
    I(f"v_add_u32 v{p2}, v{pp}, v{pp+1}")
    I(f"v_add_u32 v{p3}, v{p2}, v{pp+2}")
    I(f"v_add_u32 v{tot}, v{p3}, v{pp+3}")
    I(f"v_mov_b32 v{x}, v{tot}")
    wave_scan(x)
    I(f"v_sub_u32 v{st}, v{x}, v{tot}")
    I(f"v_readlane_b32 s{sT+9}, v{x}, 63")
    I(f"v_add_u32 v{st+1}, v{st}, v{pp}")
    I(f"v_add_u32 v{st+2}, v{st}, v{p2}")
    I(f"v_add_u32 v{st+3}, v{st}, v{p3}")
    I(f"s_movk_i32 s{sT+10}, {P_IMG}")
    for j in range(4):
        I(f"v_mad_u32_u24 v{ad+j}, v{st+j}, 12, s{sT+10}")
    I(f"ds_write_b128 v{a16}, {vr(ad,4)} offset:{P_ST}")
    for j in range(4):
        I(f"v_lshl_or_b32 v{c+j}, v{c+j}, 13, v{st+j}")
    for j in range(4):
        I(f"v_or_b32 v{c+j}, s{sTag}, v{c+j}")
    I(f"ds_write_b128 v{a16}, {vr(c,4)} offset:{P_ENT}")
    for k in range(10):
        I(f"ds_read_b32 v{B4[k]}, v{B4[k]} offset:{P_ST}")
    I(f"v_lshlrev_b32 v{a16}, 3, v{vLane}")
    I(f"ds_read_b64 {vr(pE4,2)}, v{a16} offset:{P_ENT}")
    I(f"ds_read_b64 {vr(pE4+2,2)}, v{a16} offset:{P_ENT+512}")
    for k in range(10):
        if k == 0: vm.wait("i0")
        if k == 4: vm.wait("i1")
        if k == 8: vm.wait("i2")
        q = pT + 1 + (k & 3)
        I(f"v_mul_u32_u24 v{q}, 26843, v{IN[k]}")
        I(f"v_lshl_or_b32 v{IN[k]}, v{IN[k]}, 14, v{O[k]}")
        I(f"v_lshrrev_b32 v{q}, 28, v{q}")
        I(f"v_and_or_b32 v{IN[k]}, v{q}, 12, v{IN[k]}")
    I("s_waitcnt lgkmcnt(0)")
    for k in range(10):
        I(f"v_mad_u32_u24 v{B4[k]}, v{RK[k]}, 6, v{B4[k]}")
    for k in range(10):
        I(f"v_and_b32 v{RK[k]}, 1, v{RK[k]}")
    for k in range(10):
        I(f"v_mad_i32_i24 v{O[k]}, v{RK[k]}, -2, v{B4[k]}")
    for k in range(10):
        I(f"ds_write_b32 v{O[k]}, v{IN[k]}")
    for k in range(10):
        I(f"v_mad_i32_i24 v{B4[k]}, v{RK[k]}, -4, v{B4[k]}")
    vm.wait("a2")
    for k in range(10):
        op = "ds_write_b16_d16_hi" if (k & 1) else "ds_write_b16"
        I(f"{op} v{B4[k]}, v{pAN + (k >> 1)} offset:8")
    I(f"s_lshl_b32 s{sT+10}, s2, 16")
    I(f"s_add_u32 s20, s4, s{sT+10}")
    I("s_addc_u32 s21, s5, 0")
    I(f"s_mul_i32 s22, s{sT+9}, 12")
    I("s_add_u32 s22, s22, 15")
    I("s_and_b32 s22, s22, 0xfffffff0")
    I("s_mov_b32 s23, 0x20000")
    I("s_waitcnt vmcnt(0)")
    for j in range(4):
        I(f"v_lshl_or_b32 v{vWd1+j}, v{pHi+j}, 16, v{vWd1+j}")
    I(f"v_cmp_gt_u32 vcc, 32, v{vLane}")
    for j in range(2):
        I(f"v_lshl_or_b32 v{vWsbf+j}, v{pHi+4+j}, 16, v{vWsbf+j}")
        I(f"v_lshl_or_b32 v{vWup+j}, v{pHi+6+j}, 16, v{vWup+j}")
        I(f"v_lshl_or_b32 v{vWrb+j}, v{vWrb+j}, 16, v{vWrb+j}")
    for j in range(4):
        I(f"v_cndmask_b32 v{vWd2+j}, v{vWd1+j}, v{vZero}, vcc")
    for j in range(4):
        I(f"v_cndmask_b32 v{vWd1+j}, v{vZero}, v{vWd1+j}, vcc")
    I(f"v_and_b32 v{vCen1}, s{sHi}, v{vCen0}")
    I(f"v_lshlrev_b32 v{vCen0}, 16, v{vCen0}")
    I(f"v_lshlrev_b32 v{vFreq}, 16, v{vFreq}")
    I(f"v_mul_f32 v{vFreq}, 0.15915494, v{vFreq}")
    for p in range(5):
        I(f"v_lshlrev_b32 v{vDist+p}, 16, v{vDist+p}")
    I("s_waitcnt lgkmcnt(0)")
    stamp(4)
    I("s_barrier")
    stamp(5)
    I(f"v_add_u32 v{pA8}, {P_IMG}, v{pA16}")
    for r in range(4):
        I(f"ds_read_b128 {vr(64+4*r,4)}, v{pA8} offset:{r*16384}")
    for r in range(4):
        I(f"s_waitcnt lgkmcnt({3-r})")
        if r == 0:
            I(f"buffer_store_dwordx4 {vr(64,4)}, v{pA16}, s[20:23], 0 offen sc1")
        else:
            I(f"s_mov_b32 s{sT+10}, {r*16384}")
            I(f"buffer_store_dwordx4 {vr(64+4*r,4)}, v{pA16}, s[20:23], s{sT+10} offen sc1")
    stamp(6)
    pub = 80
    I(f"v_mov_b32 v{pub}, v{pE4}")
    I(f"v_mov_b32 v{pub+1}, s{sNonce}")
    I(f"v_mov_b32 v{pub+2}, v{pE4+1}")
    I(f"v_mov_b32 v{pub+3}, s{sNonce}")
    I(f"v_mov_b32 v{pub+4}, v{pE4+2}")
    I(f"v_mov_b32 v{pub+5}, s{sNonce}")
    I(f"v_mov_b32 v{pub+6}, v{pE4+3}")
    I(f"v_mov_b32 v{pub+7}, s{sNonce}")
    I(f"v_lshlrev_b32 v{pub+8}, 4, v{vLane}")
    for j in range(20):
        I(f"v_mov_b32 v{vAcc+j}, 0")
    pa = pub + 9; pd = pub + 10
    I(f"v_lshlrev_b32 v{pa}, 11, v{vLane}")
    I(f"s_lshl_b32 s{sT}, s{sWave}, 15")
    I(f"s_lshl_b32 s{sT+1}, s{sB}, 3")
    I(f"s_add_u32 s{sT}, s{sT}, s{sT+1}")
    I(f"s_add_u32 s{sT}, s{sT}, {WS_TB}")
    I(f"s_lshl_b32 s{sT+1}, s{sWave}, 4")
    I(f"s_sub_u32 s{sT+1}, {NB}, s{sT+1}")
    I(f"s_min_u32 s{sT+1}, s{sT+1}, 16")
    I(f"s_bfm_b32 s{sValid}, s{sT+1}, 0")
    I(f"v_mov_b32 v{vEnt}, 0")
    I("s_waitcnt vmcnt(0)")
    I("s_barrier")
    stamp(7)
    I(f"s_cmp_lg_u32 s{sWave}, 0")
    I("s_cbranch_scc1 K_nopub")
    I(f"s_lshl_b32 s{sT+2}, s2, 11")
    I(f"s_add_u32 s{sT+2}, s{sT+2}, {WS_TB}")
    I(f"buffer_store_dwordx4 {vr(pub,4)}, v{pub+8}, s[8:11], s{sT+2} offen sc1")
    I(f"buffer_store_dwordx4 {vr(pub+4,4)}, v{pub+8}, s[8:11], s{sT+2} offen offset:1024 sc1")
    L("K_nopub")
    I(f"s_mov_b32 s{sT+3}, 0")
    I(f"s_mov_b32 exec_lo, s{sValid}")
    I("s_mov_b32 exec_hi, 0")
    L("K_poll")
    I(f"buffer_load_dwordx2 {vr(pd,2)}, v{pa}, s[8:11], s{sT} offen sc1")
    I("s_waitcnt vmcnt(0)")
    I(f"v_cmp_ne_u32 vcc, s{sNonce}, v{pd+1}")
    I(f"v_and_b32 v{pd+1}, 0xf8000000, v{pd}")
    I(f"v_cmp_ne_u32_e64 {sr(sT+4,2)}, s{sTag}, v{pd+1}")
    I(f"s_or_b64 {sr(sT+4,2)}, vcc, {sr(sT+4,2)}")
    I("s_cbranch_scc0 K_polled")
    I("s_sleep 2")
    I(f"s_add_u32 s{sT+3}, s{sT+3}, 1")
    I(f"s_cmp_lt_u32 s{sT+3}, 40000")
    I("s_cbranch_scc1 K_poll")
    I("s_mov_b64 exec, -1")
    I("s_branch K_end")
    L("K_polled")
    I(f"v_and_b32 v{vEnt}, 0x7ffffff, v{pd}")
    I("s_mov_b64 exec, -1")
    stamp(8)
    cn = bT
    I(f"v_lshrrev_b32 v{cn}, 13, v{vEnt}")
    I("s_mov_b64 exec, 0xffff")
    I(f"ds_max_u32 v{vZero}, v{cn} offset:{L_MISC+4}")
    I("s_mov_b64 exec, -1")
    I(f"v_cmp_lt_u32 vcc, 64, v{cn}")
    I(f"s_mov_b32 s{sHasX}, 0")
    I("s_cmp_lg_u64 vcc, 0")
    I(f"s_cselect_b32 s{sHasX}, 1, 0")
    if FORCESLOW:
        I(f"s_mov_b32 s{sHasX}, 0")
        I("s_branch K_slow_next")

    L("K_round")
    vmc = VM()
    bp = bT + 1; sb = bT + 2; p2l = bT + 3; p2h = bT + 4; t0 = bT + 5; t1 = bT + 6
    ret = bT
    ta = bT + 8; td = bT + 10
    lo = bT + 14; pfd = bT + 15
    I(f"s_cmp_eq_u32 s{sHasX}, 0")
    I("s_cbranch_scc1 K_nox")
    I(f"v_lshrrev_b32 v{bp}, 3, v{vLane}")
    I(f"v_lshlrev_b32 v{t1}, 2, v{bp}")
    for X in range(2):
        I(f"ds_bpermute_b32 v{bE+X}, v{t1}, v{vEnt} offset:{32*X}")
    I(f"v_and_b32 v{p2l}, 7, v{vLane}")
    I(f"v_add_u32 v{p2l}, 32, v{p2l}")
    I(f"v_mul_u32_u24 v{sb}, 12, v{p2l}")
    I(f"v_lshl_add_u32 v{sb}, v{bp}, 16, v{sb}")
    I(f"v_lshlrev_b32 v{p2l}, 1, v{p2l}")
    I(f"v_add_u32 v{p2h}, 1, v{p2l}")
    I(f"s_lshl_b32 s{sT}, s{sWave}, 20")
    I("s_waitcnt lgkmcnt(0)")
    for X in range(2):
        m0 = sMask + 32 + 4 * X
        I(f"v_and_b32 v{t0}, 0x1fff, v{bE+X}")
        I(f"v_lshrrev_b32 v{t1}, 13, v{bE+X}")
        I(f"v_mad_u32_u24 v{bE+X}, v{t0}, 12, v{sb}")
        I(f"v_cmp_gt_i32_e64 {sr(m0,2)}, v{t1}, v{p2l}")
        I(f"v_cmp_gt_i32_e64 {sr(m0+2,2)}, v{t1}, v{p2h}")
        I(f"s_or_b64 exec, {sr(m0,2)}, 1")
        I(f"buffer_load_dwordx3 {vr(bX+4*X,3)}, v{bE+X}, s[4:7], s{sT} offen sc1")
        I("s_mov_b64 exec, -1")
        I(f"s_add_u32 s{sT}, s{sT}, {8*IMG_STRIDE}")
    L("K_nox")
    I(f"v_lshrrev_b32 v{bp}, 5, v{vLane}")
    I(f"v_lshlrev_b32 v{t1}, 2, v{bp}")
    for Lq in range(8):
        I(f"ds_bpermute_b32 v{bE+Lq}, v{t1}, v{vEnt} offset:{8*Lq}")
    I(f"v_and_b32 v{p2l}, 31, v{vLane}")
    I(f"v_add_u32 v{p2l}, s{sRound}, v{p2l}")
    I(f"v_mul_u32_u24 v{sb}, 12, v{p2l}")
    I(f"v_lshl_add_u32 v{sb}, v{bp}, 16, v{sb}")
    I(f"v_lshlrev_b32 v{p2l}, 1, v{p2l}")
    I(f"v_add_u32 v{p2h}, 1, v{p2l}")
    I(f"s_lshl_b32 s{sT}, s{sWave}, 20")
    for Lq in range(8):
        m0 = sMask + 4 * Lq
        I(f"s_waitcnt lgkmcnt({7-Lq})")
        I(f"v_and_b32 v{t0}, 0x1fff, v{bE+Lq}")
        I(f"v_lshrrev_b32 v{t1}, 13, v{bE+Lq}")
        I(f"v_mad_u32_u24 v{bE+Lq}, v{t0}, 12, v{sb}")
        I(f"v_cmp_gt_i32_e64 {sr(m0,2)}, v{t1}, v{p2l}")
        I(f"v_cmp_gt_i32_e64 {sr(m0+2,2)}, v{t1}, v{p2h}")
        I(f"s_or_b64 exec, {sr(m0,2)}, 1")
        I(f"buffer_load_dwordx3 {vr(bR+4*Lq,3)}, v{bE+Lq}, s[4:7], s{sT} offen sc1"); vmc.add(f"r{Lq}")
        I("s_mov_b64 exec, -1")
        if Lq < 7: I(f"s_add_u32 s{sT}, s{sT}, {2*IMG_STRIDE}")
    I(f"s_lshr_b32 s{sPf}, s2, 3")
    if PFA:
        I(f"s_mul_i32 s{sT}, s{sPf}, {646*128}")
        I(f"s_mul_i32 s{sT+1}, s{sWave}, {41*128}")
        I(f"s_add_u32 s{sT}, s{sT}, s{sT+1}")
        I(f"v_min_u32 v{t0}, 40, v{vLane}")
        I(f"v_lshlrev_b32 v{t0}, 7, v{t0}")
        I(f"buffer_load_dword v{pfd}, v{t0}, s[12:15], s{sT} offen"); vmc.add("pf")
    I(f"s_mul_i32 s{sPf}, s{sPf}, {323*128}")
    I(f"s_mul_i32 s{sT+1}, s{sWave}, {21*128}")
    I(f"s_add_u32 s{sPf}, s{sPf}, s{sT+1}")
    I(f"s_add_u32 s{sPf}, s{sPf}, {20000*128}")
    I(f"v_mov_b32 v{lo}, {L_REC}")
    stamp(9)
    I(f"s_cmp_eq_u32 s{sSlow}, 0")
    I("s_cbranch_scc1 K_pass2")
    I("s_waitcnt vmcnt(0)")
    I(f"v_mov_b32 v{td}, 1")
    for Lq in range(8):
        for x in range(2):
            I(f"s_mov_b64 exec, {sr(sMask+4*Lq+2*x,2)}")
            I(f"v_and_b32 v{ta+x}, 0x7fc, v{bR+4*Lq+x}")
            I(f"ds_add_u32 v{ta+x}, v{td} offset:{L_CUR}")
    I("s_mov_b64 exec, -1")
    I("s_waitcnt lgkmcnt(0)")
    I("s_barrier")
    I(f"s_cmp_lg_u32 s{sWave}, 0")
    I("s_cbranch_scc1 K_noscan")
    ca = 96; cb = 100; sa = 104; sx = 105; s0 = 106; ia = 108
    I(f"v_lshlrev_b32 v{sa}, 5, v{vLane}")
    I(f"v_cmp_gt_u32 vcc, 40, v{vLane}")
    for j in range(8): I(f"v_mov_b32 v{ca+j}, 0")
    I("s_mov_b64 exec, vcc")
    I(f"ds_read_b128 {vr(ca,4)}, v{sa} offset:{L_CUR}")
    I(f"ds_read_b128 {vr(cb,4)}, v{sa} offset:{L_CUR+16}")
    I("s_mov_b64 exec, -1")
    I("s_waitcnt lgkmcnt(0)")
    I(f"v_add_u32 v{sx}, v{ca}, v{ca+1}")
    for j in (2, 3, 4, 5, 6, 7): I(f"v_add_u32 v{sx}, v{sx}, v{ca+j}")
    I(f"v_mov_b32 v{s0}, v{sx}")
    wave_scan(s0)
    I(f"v_sub_u32 v{s0}, v{s0}, v{sx}")
    I(f"v_lshlrev_b32 v{s0}, 3, v{s0}")
    I(f"v_add_u32 v{s0}, {L_REC}, v{s0}")
    I("s_mov_b64 exec, vcc")
    for h, cc in enumerate((ca, cb)):
        I(f"v_mov_b32 v{ia}, v{s0}")
        I(f"v_add_u32 v{sx}, v{cc}, v{cc+1}")
        I(f"v_lshl_add_u32 v{ia+2}, v{sx}, 3, v{s0}")
        I(f"v_add_u32 v{ia+1}, -8, v{ia+2}")
        I(f"v_add_u32 v{sx}, v{cc+2}, v{cc+3}")
        I(f"v_lshl_add_u32 v{s0}, v{sx}, 3, v{ia+2}")
        I(f"v_add_u32 v{ia+3}, -8, v{s0}")
        I(f"ds_write_b128 v{sa}, {vr(ia,4)} offset:{L_CUR+16*h}")
        I(f"ds_write_b128 v{sa}, {vr(ia,4)} offset:{L_INIT+16*h}")
        I("s_nop 1")
    I("s_mov_b64 exec, -1")
    I("s_waitcnt lgkmcnt(0)")
    L("K_noscan")
    I("s_barrier")
    L("K_pass2")
    def atom(K, m, u, r):
        I(f"v_and_b32 v{ta+u}, 0x7fc, v{K}")
        I(f"v_bfe_i32 v{td+u}, v{K}, 2, 1")
        I(f"v_lshl_add_u32 v{td+u}, v{td+u}, 4, 8")
        I(f"s_mov_b64 exec, {sr(m,2)}")
        I(f"ds_add_rtn_u32 v{r}, v{ta+u}, v{td+u} offset:{L_CUR}")
        I("s_mov_b64 exec, -1")
    def put(K, A, x, m, r, sp):
        I(f"v_med3_i32 v{r}, v{r}, v{lo}, s{sHiB}")
        if x == 0: I(f"v_lshlrev_b32 v{sp}, 16, v{A}")
        else:      I(f"v_and_b32 v{A}, s{sHi}, v{A}")
        I(f"s_mov_b64 exec, {sr(m,2)}")
        I(f"ds_write2_b32 v{r}, v{K}, v{sp if x == 0 else A} offset0:0 offset1:1")
        I("s_mov_b64 exec, -1")
    def bin_pair(regs, masks, tags):
        for h in range(2):
            if tags: vmc.wait(tags[h])
            for x in range(2):
                atom(regs[h] + x, masks[h] + 2*x, x, ret + 2*h + x)
        I("s_waitcnt lgkmcnt(0)")
        for h in range(2):
            for x in range(2):
                put(regs[h] + x, regs[h] + 2, x, masks[h] + 2*x, ret + 2*h + x, regs[h] + 3)
    for Lq in range(0, 8, 2):
        bin_pair([bR + 4*Lq, bR + 4*Lq + 4], [sMask + 4*Lq, sMask + 4*Lq + 4], [f"r{Lq}", f"r{Lq+1}"])
    I(f"s_cmp_eq_u32 s{sHasX}, 0")
    I("s_cbranch_scc1 K_nox2")
    bin_pair([bX, bX + 4], [sMask + 32, sMask + 36], None)
    L("K_nox2")
    I("s_waitcnt lgkmcnt(0)")
    stamp(10)
    I("s_barrier")
    stamp(11)
    cu = 96; it = 100; ck = 104; ck2 = 108; a0 = 112; a1 = 113; a2 = 114; mx = 115
    I(f"s_mul_i32 s{sT}, s{sWave}, 80")
    I(f"v_lshlrev_b32 v{a1}, 4, v{vLane}")
    I(f"v_add_u32 v{a0}, s{sT}, v{a1}")
    I(f"ds_read_b128 {vr(cu,4)}, v{a0} offset:{L_CUR}")
    I(f"ds_read_b128 {vr(it,4)}, v{a0} offset:{L_INIT}")
    I(f"ds_read_b32 v{mx}, v{vZero} offset:{L_MISC+4}")
    I(f"ds_read_b128 {vr(ck,4)}, v{a1} offset:{L_CUR}")
    I(f"v_and_b32 v{a2}, 0xf0, v{a1}")
    I(f"ds_read_b128 {vr(ck2,4)}, v{a2} offset:{L_CUR+1024}")
    I("s_waitcnt lgkmcnt(0)")
    I(f"v_readfirstlane_b32 s{sMaxCnt}, v{mx}")
    I(f"s_cmp_lg_u32 s{sSlow}, 0")
    I("s_cbranch_scc1 K_params")
    I(f"v_add_u32 v{ck+1}, 8, v{ck+1}")
    I(f"v_add_u32 v{ck+3}, 8, v{ck+3}")
    I(f"v_add_u32 v{ck2+1}, 8, v{ck2+1}")
    I(f"v_add_u32 v{ck2+3}, 8, v{ck2+3}")
    I(f"v_cmp_gt_i32 vcc, v{ck}, v{ck+1}")
    I(f"v_cmp_gt_i32_e64 {sr(sT+2,2)}, v{ck+2}, v{ck+3}")
    I(f"v_cmp_gt_i32_e64 {sr(sT+4,2)}, v{ck2}, v{ck2+1}")
    I(f"v_cmp_gt_i32_e64 {sr(sT+6,2)}, v{ck2+2}, v{ck2+3}")
    I(f"s_or_b64 vcc, vcc, {sr(sT+2,2)}")
    I(f"s_or_b64 vcc, vcc, {sr(sT+4,2)}")
    I(f"s_or_b64 vcc, vcc, {sr(sT+6,2)}")
    I(f"s_cmp_gt_u32 s{sMaxCnt}, 80")
    I(f"s_cselect_b32 s{sT+2}, 1, 0")
    I("s_cmp_lg_u64 vcc, 0")
    I(f"s_cselect_b32 s{sT+3}, 1, 0")
    I(f"s_or_b32 s{sT+2}, s{sT+2}, s{sT+3}")
    I(f"s_cmp_eq_u32 s{sT+2}, 0")
    I("s_cbranch_scc1 K_params")
    I(f"s_mov_b32 s{sSlow}, 1")
    I(f"s_mov_b32 s{sHasX}, 0")
    I(f"s_mov_b32 s{sRound}, 0")
    I("s_waitcnt vmcnt(0)")
    I("s_barrier")
    L("K_slow_next")
    I(f"v_min_u32 v{a0}, 319, v0")
    I(f"v_lshlrev_b32 v{a0}, 2, v{a0}")
    I(f"ds_write_b32 v{a0}, v{vZero} offset:{L_CUR}")
    I("s_waitcnt lgkmcnt(0)")
    I("s_barrier")
    I("s_branch K_round")
    L("K_params")
    d1 = ck; d3 = ck + 1; nn = ck + 2; stp = ck + 3; tt = ck2
    I(f"v_sub_u32 v{d1}, v{cu+1}, v{cu}")
    I(f"v_sub_u32 v{d3}, v{cu+3}, v{cu+2}")
    I(f"v_add_u32 v{nn}, 8, v{it+3}")
    I(f"v_sub_u32 v{stp}, v{cu}, v{it}")
    I(f"v_sub_u32 v{tt}, v{it+1}, v{cu+1}")
    I(f"v_add_u32 v{d1}, 8, v{d1}")
    I(f"v_add_u32 v{d3}, 8, v{d3}")
    I(f"v_add_u32 v{stp}, v{stp}, v{tt}")
    I(f"v_sub_u32 v{tt}, v{cu+2}, v{it+2}")
    I(f"v_add_u32 v{stp}, v{stp}, v{tt}")
    I(f"v_sub_u32 v{tt}, v{it+3}, v{cu+3}")
    I(f"v_add_u32 v{stp}, v{stp}, v{tt}")
    I(f"v_add_u32 v{stp}, 255, v{stp}")
    I(f"v_lshrrev_b32 v{stp}, 8, v{stp}")
    I(f"v_min_u32 v{stp}, 640, v{stp}")
    I(f"v_mov_b32 v{vRO}, v{vRecOff}")
    for p in range(5):
        I(f"v_readlane_b32 s{sA0+p}, v{it}, {p}")
        I(f"v_readlane_b32 s{sT1+p}, v{cu}, {p}")
        I(f"v_readlane_b32 s{sD1+p}, v{d1}, {p}")
        I(f"v_readlane_b32 s{sT3+p}, v{cu+2}, {p}")
        I(f"v_readlane_b32 s{sD3+p}, v{d3}, {p}")
        I(f"v_readlane_b32 s{sN+p}, v{nn}, {p}")
        I(f"v_readlane_b32 s{sSt+p}, v{stp}, {p}")
    I(f"s_max_u32 s{sS}, s{sSt}, 4")
    for p in range(1, 5):
        I(f"s_max_u32 s{sS}, s{sS}, s{sSt+p}")
    I(f"s_sub_u32 s{sS}, s{sS}, 1")
    I(f"s_mov_b32 s{sJ}, 0")
    stamp(15)
    pre = [vD1, vD1 + 2, vD2, vD2 + 2, vAp]
    for p in range(5):
        chain(p, pre[p], vX + (p & 1))
    I(f"v_add_u32 v{vRO}, 256, v{vRO}")
    chain(0, vRec, vX)
    for p in range(5):
        I(f"s_waitcnt lgkmcnt({5-p})")
        issue_tile(p, pre[p], vX + 2, vX + 3)
        I("s_nop 0")
        I(f"v_cvt_pk_bf16_f32 v{vCV+p}, v{vX+3}, v{vX+3}")
    stamp(12)

    def coef_io(p):
        I(f"ds_write_b16 v{vCA+p}, v{vCV+p}")
        I(f"ds_read_b128 {vr(vBt,4)}, v{vCoefR}")
        I(f"ds_write_b16 v{vCA+p}, v{vZero}")

    def mfma1(p):
        I(f"v_mfma_f32_16x16x32_bf16 {vr(vD1,4)}, {vr(vG+4*p,4)}, {vr(vWd1,4)}, 0")
        I(f"v_mfma_f32_16x16x32_bf16 {vr(vD2,4)}, {vr(vG+4*p,4)}, {vr(vWd2,4)}, 0")

    def pack():
        I(f"v_cvt_pk_bf16_f32 v{vAp}, v{vD1}, v{vD1+1}")
        I(f"v_cvt_pk_bf16_f32 v{vAp+1}, v{vD1+2}, v{vD1+3}")
        I(f"v_cvt_pk_bf16_f32 v{vAp+2}, v{vD2}, v{vD2+1}")
        I(f"v_cvt_pk_bf16_f32 v{vAp+3}, v{vD2+2}, v{vD2+3}")

    def mfma2(p):
        I(f"v_mfma_f32_16x16x32_bf16 {vr(vAcc+4*p,4)}, {vr(vAp,4)}, {vr(vBt,4)}, {vr(vAcc+4*p,4)}")

    L("K_step")
    for p in range(5):
        q = (p + 1) % 5
        L(f"K_blk_{p}")
        I(f"s_cmp_lt_u32 s{sJ}, s{sSt+p}")
        I(f"s_cbranch_scc0 K_skip_{p}")
        coef_io(p)
        I("s_waitcnt vmcnt(4) lgkmcnt(3)")
        mfma1(p)
        issue_tile(p, vRec, vX + 2, vX + 3)
        if p == 4: I(f"v_add_u32 v{vRO}, 256, v{vRO}")
        chain(q, vRec, vX)
        pack()
        I(f"v_cvt_pk_bf16_f32 v{vCV+p}, v{vX+3}, v{vX+3}")
        I("s_waitcnt lgkmcnt(2)")
        mfma2(p)
    L("K_stepend")
    stamp_dyn(sJ, 16)
    I(f"s_add_u32 s{sJ}, s{sJ}, 1")
    I(f"s_cmp_gt_u32 s{sJ}, 3")
    I("s_cbranch_scc1 K_nobar")
    if PFB:
        I(f"s_cmp_gt_u32 s{sJ}, 2")
        I("s_cbranch_scc1 K_nopf")
        I(f"v_min_u32 v{vX+4}, 20, v{vLane}")
        I(f"v_lshlrev_b32 v{vX+4}, 7, v{vX+4}")
        I(f"buffer_load_dword v{vX+5}, v{vX+4}, s[12:15], s{sPf} offen")
        I(f"s_add_u32 s{sPf}, s{sPf}, {10000*128}")
        L("K_nopf")
    if STEPBAR: I("s_barrier")
    L("K_nobar")
    I(f"s_cmp_lt_u32 s{sJ}, s{sS}")
    I("s_cbranch_scc1 K_step")
    for p in range(5):
        I(f"s_cmp_lt_u32 s{sJ}, s{sSt+p}")
        I(f"s_cbranch_scc0 K_last_{p}")
        coef_io(p)
        I(f"s_waitcnt vmcnt({4-p})")
        mfma1(p)
        I("s_nop 7")
        pack()
        I("s_nop 0")
        I("s_waitcnt lgkmcnt(1)")
        mfma2(p)
        L(f"K_last_{p}")
    stamp(13)
    I("s_waitcnt vmcnt(0) lgkmcnt(0)")
    I(f"s_cmp_eq_u32 s{sSlow}, 0")
    I("s_cbranch_scc1 K_fin")
    I(f"s_add_u32 s{sRound}, s{sRound}, 32")
    I(f"s_lshl_b32 s{sT}, s{sRound}, 1")
    I(f"s_cmp_ge_u32 s{sT}, s{sMaxCnt}")
    I("s_cbranch_scc1 K_fin")
    I("s_barrier")
    I("s_branch K_slow_next")
    L("K_fin")
    I("s_nop 7")
    for i in range(5):
        epilogue(i)
    I("s_cmp_lg_u32 s2, 0")
    I("s_cbranch_scc1 K_nog")
    I(f"s_cmp_lg_u32 s{sWave}, 0")
    I("s_cbranch_scc1 K_nog")
    I(f"v_mov_b32 v{vX}, s{sNonce}")
    I("s_mov_b64 exec, 1")
    I(f"buffer_store_dword v{vX}, v{vZero}, s[8:11], 0 offen offset:{WS_G}")
    I("s_mov_b64 exec, -1")
    L("K_nog")
    stamp(14)
    stamp_flush(128 << 20, vX)
    I("s_branch K_end")
    for p in range(5):
        q = (p + 1) % 5
        L(f"K_skip_{p}")
        I("s_mov_b64 exec, 1")
        I(f"buffer_load_dwordx4 {vr(vG+4*p,4)}, v{vZero}, s[12:15], s{sOOB} offen")
        I("s_mov_b64 exec, -1")
        if p == 4: I(f"v_add_u32 v{vRO}, 256, v{vRO}")
        chain(q, vRec, vX)
        I(f"s_branch {'K_stepend' if p == 4 else f'K_blk_{p+1}'}")
    L("K_end")
    I("s_endpgm")


def main():
    K = NAME + "_kernel"
    header(K, NB, 1024, L_END)
    gen(K)
    out.append('.section .rodata,"a"')
    out.append(".p2align 6")
    kdesc(K, 128)
    open(OUTF, "w").write("\n".join(out) + "\n")


main()
```
